```python
import torch

def _softmax(x, axis=-1):
    return torch.softmax(x, dim=axis)

def _gelu(x):
    return torch.nn.functional.gelu(x, approximate='tanh')

def _silu(x):
    return torch.nn.functional.silu(x)

def _sigmoid(x):
    return torch.sigmoid(x)

def _layernorm(x, axis=-1, eps=1e-05):
    m = x.mean(dim=axis, keepdim=True)
    v = x.var(dim=axis, keepdim=True, unbiased=False)
    return (x - m) / torch.sqrt(v + eps)

def _scatter_add(tgt, idx, src, axis=0):
    return tgt.clone().index_add_(axis, idx, src)

def _segment_sum(src, seg, n):
    out = torch.zeros((n,) + src.shape[1:], dtype=src.dtype)
    return out.index_add_(0, seg, src)

def _pad(x, pw):
    flat = tuple((v for pair in reversed(pw) for v in pair))
    return torch.nn.functional.pad(x, flat)
kernel_name = 'adaLN_cond__sliding_block_cached__glu_gated_bilinear__prompt'

def setup_inputs():

    _w = lambda a: (lambda t: t.to(torch.bfloat16) if t.is_floating_point() else t)(torch.as_tensor(a))

    def _A_setup():
        B, Sq, D = (1, 2048, 640)
        Hq, Hkv, Sk, Dh = (32, 32, 2048, 128)
        assert Hq % Hkv == 0, (Hq, Hkv)
        return {'x': _w((lambda *s: torch.randn(*s, dtype=torch.bfloat16) * 0.05)(B, Sq, D)), 'k_cache': _w((lambda *s: torch.randn(*s, dtype=torch.bfloat16) * 1.6)(B, Hkv, Sk, Dh)), 'v_cache': _w((lambda *s: torch.randn(*s, dtype=torch.bfloat16) * 0.8)(B, Hkv, Sk, Dh)), 'wq': _w((lambda *s: torch.randn(*s, dtype=torch.bfloat16) * 1.6)(D, Hq * Dh) * D ** (-0.5)), 'wo': _w((lambda *s: torch.randn(*s, dtype=torch.bfloat16) * 0.8)(Hq * Dh, D) * (Hq * Dh) ** (-0.5))}
    _A_in = _A_setup()

    def _B_setup():
        B, S, D, F = (1, 2048, 640, 1728)
        return {'x': _w((lambda *s: torch.randn(*s, dtype=torch.bfloat16) * 0.05)(B, S, D)), 'w_gate': _w((lambda *s: torch.randn(*s, dtype=torch.bfloat16) * 0.4)(D, F) * D ** (-0.5)), 'w_up': _w((lambda *s: torch.randn(*s, dtype=torch.bfloat16) * 0.4)(D, F) * D ** (-0.5)), 'w_down': _w((lambda *s: torch.randn(*s, dtype=torch.bfloat16) * 0.4)(F, D) * F ** (-0.5))}
    _B_in = _B_setup()
    return {'A_x': _A_in['x'], 'A_k_cache': _A_in['k_cache'], 'A_v_cache': _A_in['v_cache'], 'A_wq': _A_in['wq'], 'A_wo': _A_in['wo'], 'B_x': _B_in['x'], 'B_w_gate': _B_in['w_gate'], 'B_w_up': _B_in['w_up'], 'B_w_down': _B_in['w_down'], 'c': _w((lambda *s: torch.randn(*s, dtype=torch.bfloat16) * 0.2)(1, 640) * 8.0), 'w_mod': _w((lambda *s: torch.randn(*s, dtype=torch.bfloat16) * 0.2)(640, 6 * 640) * 640 ** (-0.5) * 8.0)}

def reference(A_x, A_k_cache, A_v_cache, A_wq, A_wo, B_x, B_w_gate, B_w_up, B_w_down, c, w_mod):

    def _A_ref(x, k_cache, v_cache, wq, wo):
        B, Sq, D = x.shape
        Hq, Dh = (32, 128)
        Hkv, Sk = (k_cache.shape[1], k_cache.shape[2])
        W = min(4096, max(256, Sk // 4))
        rep = Hq // Hkv
        q = (lambda x, *d: x.permute(*d))((x @ wq).reshape(B, Sq, Hq, Dh), 0, 2, 1, 3)
        k = (lambda x, n, axis: torch.repeat_interleave(x, n, dim=axis))(k_cache[:, :, Sk - W:, :], rep, axis=1)
        v = (lambda x, n, axis: torch.repeat_interleave(x, n, dim=axis))(v_cache[:, :, Sk - W:, :], rep, axis=1)
        scores = torch.einsum('bhqd,bhkd->bhqk', q, k) * Dh ** (-0.5)
        p = _softmax(scores, axis=-1)
        o = torch.einsum('bhqk,bhkd->bhqd', p, v)
        return (lambda x, *d: x.permute(*d))(o, 0, 2, 1, 3).reshape(B, Sq, Hq * Dh) @ wo

    def _B_ref(x, w_gate, w_up, w_down):
        g = torch.einsum('bsd,df->bsf', x, w_gate)
        u = torch.einsum('bsd,df->bsf', x, w_up)
        h = g * u
        return torch.einsum('bsf,fd->bsd', h, w_down)
    x = A_x
    mod = (_silu(c) @ w_mod).reshape(c.shape[0], 6, 1, -1)
    sa, ca, ga, sb, cb, gb = (mod[:, 0].clone(), mod[:, 1].clone(), mod[:, 2].clone(), mod[:, 3].clone(), mod[:, 4].clone(), mod[:, 5].clone())
    h = _layernorm(x, axis=-1) * (1 + ca) + sa
    x = x + ga * _A_ref(h, A_k_cache, A_v_cache, A_wq, A_wo)
    h = _layernorm(x, axis=-1) * (1 + cb) + sb
    x = x + gb * _B_ref(h, B_w_gate, B_w_up, B_w_down)
    return x
```

```python
import re

REG_RE = re.compile(r'\b([vas])(\d+)\b|\b([vas])\[(\d+):(\d+)\]|\b(vcc|exec|m0|scc|vcc_lo|vcc_hi|exec_lo|exec_hi)\b')


def regs_of(op):
    out = []
    for m in REG_RE.finditer(op):
        if m.group(1):
            out.append(m.group(1) + m.group(2))
        elif m.group(3):
            out += [m.group(3) + str(i) for i in range(int(m.group(4)), int(m.group(5)) + 1)]
        else:
            r = m.group(6)
            out.append(r.split('_')[0])
    return out


TRANS = ('v_exp_f32', 'v_log_f32', 'v_rcp_f32', 'v_rsq_f32', 'v_sqrt_f32', 'v_sin_f32', 'v_cos_f32')


class Ins:
    __slots__ = ('text', 'op', 'kind', 'rd', 'wr', 'srcC', 'srcAB', 'passes', 'tag', 'ws', 'auto', 'wide', 'sdata')

    def __init__(self, text, tag=None, auto=False):
        self.text = text
        self.tag = tag
        self.auto = auto
        self.srcC = []
        self.srcAB = []
        self.passes = 0
        self.wide = False
        self.sdata = []
        t = text.split(';')[0].strip()
        if t.endswith(':') or t.startswith('.') or not t:
            self.op = t
            self.kind = 'label' if t.endswith(':') else 'dir'
            self.rd, self.wr, self.ws = [], [], 0
            return
        parts = t.split(None, 1)
        op = parts[0]
        self.op = op
        ops = [o.strip() for o in parts[1].split(',')] if len(parts) > 1 else []
        self.ws = 1
        rd, wr = [], []
        allr = lambda lst: [r for o in lst for r in regs_of(o)]
        if op.startswith('v_mfma'):
            self.kind = 'mfma'
            self.passes = 8 if '32x32x16' in op else 4
            wr = regs_of(ops[0])
            self.srcAB = regs_of(ops[1]) + regs_of(ops[2])
            self.srcC = regs_of(ops[3])
            rd = self.srcAB + self.srcC
        elif op.startswith('ds_read') or op.startswith('ds_bpermute') or op.startswith('ds_swizzle'):
            self.kind = 'ds_read'
            wr = regs_of(ops[0])
            rd = allr(ops[1:])
        elif op.startswith('ds_'):
            self.kind = 'ds_write'
            rd = allr(ops)
        elif op.startswith('buffer_wbl2') or op.startswith('buffer_inv'):
            self.kind = 'vm_store'
        elif op.startswith('buffer_load') or op.startswith('global_load'):
            if re.search(r'\blds\b', t) or '_lds_' in op:
                self.kind = 'dma'
                rd = allr(ops) + ['m0']
            else:
                self.kind = 'vm_load'
                wr = regs_of(ops[0])
                rd = allr(ops[1:])
        elif op.startswith('buffer_store') or op.startswith('global_store'):
            self.kind = 'vm_store'
            rd = allr(ops)
            self.wide = op.endswith('x4') or op.endswith('x3')
            self.sdata = regs_of(ops[0] if op.startswith('buffer') else ops[1])
        elif op.startswith('buffer_atomic') or op.startswith('global_atomic'):
            ret = re.search(r'\bsc0\b', t)
            self.kind = 'vm_load' if ret else 'vm_store'
            rd = allr(ops)
            if ret:
                wr = regs_of(ops[0])
        elif op.startswith('s_load') or op in ('s_memtime', 's_memrealtime') or op.startswith('s_buffer_load'):
            self.kind = 'smem'
            wr = regs_of(ops[0])
            rd = allr(ops[1:])
        elif op == 's_waitcnt':
            self.kind = 'wait'
        elif op == 's_nop':
            self.kind = 'nop'
            self.ws = int(ops[0], 0) + 1
        elif op == 's_barrier':
            self.kind = 'barrier'
        elif op.startswith('s_cbranch') or op in ('s_branch', 's_endpgm', 's_setpc_b64', 's_swappc_b64'):
            self.kind = 'branch'
            if 'scc' in op: rd = ['scc']
            if 'vcc' in op: rd = ['vcc']
            if 'exec' in op: rd = ['exec']
        elif op in ('s_sleep', 's_setprio'):
            self.kind = 'salu'
        elif op.startswith('s_cmp') or op.startswith('s_bitcmp'):
            self.kind = 'salu'
            rd = allr(ops)
            wr = ['scc']
        elif op.startswith('s_'):
            self.kind = 'salu'
            wr = regs_of(ops[0]) + ['scc']
            rd = allr(ops[1:])
            if 'saveexec' in op:
                wr.append('exec')
                rd.append('exec')
            if op.startswith('s_addk') or op.startswith('s_mulk') or op.startswith('s_cmov'):
                rd += regs_of(ops[0])
            if op.startswith('s_addc') or op.startswith('s_subb') or op.startswith('s_cselect') or op.startswith('s_cmov'):
                rd.append('scc')
            if op in ('s_mov_b32', 's_mov_b64', 's_movk_i32', 's_mul_i32', 's_mul_hi_u32', 's_getreg_b32', 's_cselect_b32', 's_cselect_b64', 's_getpc_b64', 's_cmov_b32'):
                wr.remove('scc')
        elif op.startswith('v_'):
            base = re.sub(r'_(e32|e64|dpp|sdwa)$', '', op)
            self.kind = 'trans' if base in TRANS else 'valu'
            if op.startswith('v_cmp'):
                wr = regs_of(ops[0])
                rd = allr(ops[1:])
                if op.startswith('v_cmpx'): wr.append('exec')
            elif base in ('v_add_co_u32', 'v_sub_co_u32', 'v_addc_co_u32', 'v_subb_co_u32', 'v_subrev_co_u32'):
                wr = regs_of(ops[0]) + regs_of(ops[1])
                rd = allr(ops[2:])
            elif base.startswith('v_permlane') and 'swap' in base:
                wr = allr(ops[:2])
                rd = allr(ops[:2])
            else:
                wr = regs_of(ops[0])
                rd = allr(ops[1:])
                if base.startswith('v_fmac') or base.startswith('v_dot2c') or base == 'v_writelane_b32' or '_dpp' in op:
                    rd += regs_of(ops[0])
        else:
            raise ValueError("unknown instruction: " + text)
        self.rd, self.wr = rd, wr

    def is_valu(self):
        return self.kind in ('valu', 'trans')


def parse_wait(text):
    vm = re.search(r'vmcnt\((\d+)\)', text)
    lg = re.search(r'lgkmcnt\((\d+)\)', text)
    return (int(vm.group(1)) if vm else None, int(lg.group(1)) if lg else None)


class Violation(Exception):
    def __init__(self, idx, fix, why):
        self.idx, self.fix, self.why = idx, fix, why


class Sim:
    def __init__(self):
        self.vmq = []
        self.lgq = []
        self.hist = []
        self.pos = 0
        self.slot_owner = {}
        self.landed = set()
        self.ready = set()
        self.quiet = set()
        self.dead = set()

    def step(self, ins):
        k = ins.kind
        vmq, lgq, hist, pos = self.vmq, self.lgq, self.hist, self.pos
        tag = ins.tag
        if tag and tag[0] == 'need':
            idx = [i for i, e in enumerate(vmq) if e[2] in tag[1]]
            if idx:
                return ('s_waitcnt vmcnt(%d)' % (len(vmq) - 1 - max(idx)), 'dma landing')
            for c in tag[1]:
                assert c in self.slot_owner.values(), 'need of chunk never loaded: %s' % (c,)
                self.landed.add(c)
            return None
        if tag and tag[0] == 'reset':
            self.slot_owner = {}; self.landed = set(); self.ready = set(); self.quiet = set(); self.dead = set()
            return None
        if k in ('label', 'dir'):
            return None
        if k == 'barrier':
            self.ready |= self.landed
            busy = {e[2] for e in lgq}
            self.quiet = {c for c in self.slot_owner.values() if c not in busy}
        if k == 'wait':
            vm, lg = parse_wait(ins.text)
            if vm is not None and len(vmq) > vm:
                del vmq[:len(vmq) - vm]
            if lg is not None:
                if lg == 0:
                    del lgq[:]
                elif not any(e[0] == 'smem' for e in lgq):
                    if len(lgq) > lg:
                        del lgq[:len(lgq) - lg]
        touched = set(ins.rd) | set(ins.wr)
        need_vm = need_lg = None
        for i, (kk, rr, _t) in enumerate(vmq):
            if rr & touched:
                need_vm = len(vmq) - 1 - i
        for i, (kk, rr, _t) in enumerate(lgq):
            if rr & touched:
                need_lg = len(lgq) - 1 - i
        if need_lg is not None and any(e[0] == 'smem' for e in lgq):
            need_lg = 0
        if need_vm is not None or need_lg is not None:
            w = 's_waitcnt'
            if need_vm is not None: w += ' vmcnt(%d)' % min(need_vm, 63)
            if need_lg is not None: w += ' lgkmcnt(%d)' % min(need_lg, 15)
            return (w, 'pending load')
        need = 0
        why = ''
        rd, wr = set(ins.rd), set(ins.wr)
        for (p, ppos) in reversed(hist):
            dist = pos - ppos - p.ws
            if dist > 24: break
            req = 0
            pw = set(p.wr)
            if p.kind == 'mfma':
                big = p.passes == 8
                if k == 'mfma':
                    if pw & set(ins.srcAB): req = max(req, 12 if big else 8)
                    if pw & set(ins.srcC):
                        if not (p.wr == ins.srcC and p.passes == ins.passes):
                            req = max(req, 10 if big else 6)
                    if (pw & wr) and not (p.wr == ins.wr):
                        req = max(req, 12 if big else 8)
                elif pw & (rd | wr):
                    req = max(req, 12 if big else 8)
                if ins.is_valu() and set(p.srcC) & wr:
                    req = max(req, 7 if big else 3)
            if p.is_valu():
                if k == 'mfma' and pw & rd: req = max(req, 2)
                if k == 'mfma' and 'exec' in pw: req = max(req, 4)
                if p.kind == 'trans' and k == 'valu' and pw & rd: req = max(req, 1)
                if p.kind == 'trans' and k == 'mfma' and pw & rd: req = max(req, 2)
                if ins.op.startswith('v_permlane') and pw & rd: req = max(req, 2)
                if '_dpp' in ins.op and pw & rd: req = max(req, 2)
                if '_dpp' in ins.op and 'exec' in pw: req = max(req, 5)
                if ins.op in ('v_readfirstlane_b32', 'v_readlane_b32') and pw & rd: req = max(req, 1)
                sw = {r for r in pw if r[0] == 's' or r == 'vcc'}
                if sw:
                    if k in ('vm_load', 'vm_store', 'dma') and sw & rd: req = max(req, 5)
                    if ins.is_valu() and sw & rd:
                        req = max(req, 4 if ins.op in ('v_readlane_b32', 'v_writelane_b32') else 2)
                    if k == 'salu' and sw & rd: req = max(req, 1)
                if ('op_sel' in p.text or 'sdwa' in p.op) and ins.is_valu() and pw & (rd | wr) and 'fma_mix_f32' not in p.op:
                    req = max(req, 1)
            if p.kind == 'salu' and 'm0' in pw and k == 'dma': req = max(req, 1)
            if p.kind == 'vm_store' and p.wide and set(p.sdata) & wr:
                req = max(req, 2 if ins.is_valu() else 1)
            if req > dist and req - dist > need:
                need = req - dist
                why = '%s -> %s' % (p.text, ins.text)
        if need:
            return ('s_nop %d' % (need - 1), why)
        ct = None
        if tag and tag[0] == 'dma':
            ct = tag[1]
            for sl in tag[2]:
                old = self.slot_owner.get(sl)
                if old is not None and old != ct:
                    assert old in self.quiet, 'DMA %s overwrites slot %s of chunk %s still being read: %s' % (ct, sl, old, ins.text)
                    self.dead.add(old)
                self.slot_owner[sl] = ct
        if tag and tag[0] == 'rd':
            ct = tag[1]
            assert ct in self.ready, 'read of chunk %s before ready: %s' % (ct, ins.text)
            assert ct not in self.dead, 'read of overwritten chunk %s: %s' % (ct, ins.text)
            self.quiet.discard(ct)
        if k == 'vm_load':
            vmq.append((k, set(ins.wr), None))
        elif k in ('vm_store', 'dma'):
            vmq.append((k, set(), ct))
        elif k == 'ds_read':
            lgq.append((k, set(ins.wr), ct))
        elif k == 'ds_write':
            lgq.append((k, set(), None))
        elif k == 'smem':
            lgq.append((k, set(ins.wr), None))
        if len(vmq) > 63:
            return (None, 'more than 63 vmem ops outstanding')
        hist.append((ins, pos))
        if len(hist) > 40: hist.pop(0)
        self.pos = pos + ins.ws
        return None


class Block:
    def __init__(self, name=''):
        self.name = name
        self.ins = []

    def __call__(self, s, tag=None):
        for l in s.split('\n'):
            l = l.strip()
            if l:
                self.ins.append(Ins(l, tag))
        return self

    def label(self, n):
        self.ins.append(Ins(n + ':'))

    def need(self, *chunks):
        self.ins.append(Ins('; need %s' % (chunks,), ('need', set(chunks))))

    def reset(self):
        self.ins.append(Ins('; lds tracking reset', ('reset',)))

    def extend(self, lst):
        for x in lst:
            if isinstance(x, Ins): self.ins.append(x)
            else: self(x)


def fix_paths(paths, verbose=False):
    total = 0
    for _ in range(50):
        n = 0
        for path in paths:
            sim = Sim()
            for b in path:
                i = 0
                while i < len(b.ins):
                    r = sim.step(b.ins[i])
                    if r is None:
                        i += 1
                        continue
                    fix, why = r
                    if fix is None:
                        raise RuntimeError('unfixable in %s at %d (%s): %s' % (b.name, i, b.ins[i].text, why))
                    if verbose and fix.startswith('s_nop'):
                        print('  [%s] %s  (%s)' % (b.name, fix, why))
                    b.ins.insert(i, Ins(fix, auto=True))
                    n += 1
        seen = set()
        for path in paths:
            for b in path:
                if id(b) in seen: continue
                seen.add(id(b))
                out = []
                for ins in b.ins:
                    if out and ins.auto and out[-1].auto and ins.kind == 'wait' and out[-1].kind == 'wait':
                        ovm, olg = parse_wait(out[-1].text)
                        nvm, nlg = parse_wait(ins.text)
                        vm = min([x for x in (ovm, nvm) if x is not None], default=None)
                        lg = min([x for x in (olg, nlg) if x is not None], default=None)
                        w = 's_waitcnt'
                        if vm is not None: w += ' vmcnt(%d)' % vm
                        if lg is not None: w += ' lgkmcnt(%d)' % lg
                        out[-1] = Ins(w, auto=True)
                        n += 1
                    elif out and ins.auto and out[-1].auto and ins.kind == 'nop' and out[-1].kind == 'nop' and ins.ws + out[-1].ws <= 16:
                        out[-1] = Ins('s_nop %d' % (ins.ws + out[-1].ws - 1), auto=True)
                    else:
                        out.append(ins)
                b.ins = out
        total += n
        if n == 0:
            return total
    raise RuntimeError('fix_paths did not converge')


class Module:
    def __init__(self):
        self.launch = []
        self.text = []
        self.kds = []

    def kernel(self, name, blocks, vgpr, sgpr, accum):
        self.text += ['.globl %s' % name, '.p2align 8', '.type %s,@function' % name, name + ':']
        for b in blocks:
            if b.name: self.text.append('    ; ---- %s' % b.name)
            for ins in b.ins:
                self.text.append(ins.text if ins.kind == 'label' else '    ' + ins.text)
        self.kds.append('\n'.join([
            '.amdhsa_kernel %s' % name,
            '  .amdhsa_next_free_vgpr %d' % vgpr,
            '  .amdhsa_next_free_sgpr %d' % sgpr,
            '  .amdhsa_accum_offset %d' % accum,
            '  .amdhsa_group_segment_fixed_size 0',
            '  .amdhsa_kernarg_size 112',
            '  .amdhsa_user_sgpr_count 2',
            '  .amdhsa_user_sgpr_kernarg_segment_ptr 1',
            '  .amdhsa_system_sgpr_workgroup_id_x 1',
            '  .amdhsa_float_denorm_mode_32 3',
            '  .amdhsa_float_denorm_mode_16_64 3',
            '.end_amdhsa_kernel']))

    def add_launch(self, name, gx, block, lds):
        self.launch.append('; @launch kernel=%s grid=(%d,1,1) block=(%d,1,1) lds=%d' % (name, gx, block, lds))

    def render(self, header=''):
        out = header + '\n'.join(self.launch) + '\n'
        out += '.amdgcn_target "amdgcn-amd-amdhsa--gfx950"\n.text\n'
        out += '\n'.join(self.text) + '\n'
        out += '.section .rodata,"a"\n'
        for k in self.kds:
            out += '.p2align 6\n' + k + '\n'
        return out


def v(x, n=1): return 'v%d' % x if n == 1 else 'v[%d:%d]' % (x, x + n - 1)
def a(x, n=1): return 'a%d' % x if n == 1 else 'a[%d:%d]' % (x, x + n - 1)
def s(x, n=1): return 's%d' % x if n == 1 else 's[%d:%d]' % (x, x + n - 1)


class Alloc:
    def __init__(self, start, limit):
        self.p, self.limit = start, limit
        self.hi = start

    def __call__(self, n=1, align=1):
        self.p = (self.p + align - 1) // align * align
        r = self.p
        self.p += n
        assert self.p <= self.limit, 'out of registers'
        self.hi = max(self.hi, self.p)
        return r


def interleave(mfmas, fillers):
    out = []
    for m, f in zip(mfmas, fillers):
        out.append(m)
        out += f
    return out


def spread(items, nslots, start=0, end=None):
    end = nslots if end is None else end
    res = [[] for _ in range(nslots)]
    n = len(items)
    w = end - start
    for i, it in enumerate(items):
        res[start + (i * w) // n].append(it)
    return res
```

```python
import sys, struct
from kasm import *

WS_FLAGS = 0
WS_MODP = 0x10000
WS_XH = 0x100000
WS_O = 0x400000
WS_PB = 0x1400000
WS_X1 = 0x2400000
WS_H2 = 0x2800000
WS_HH = 0x2C00000
WS_PD = 0x3400000
WS_STAMP = 0x8000000
WS_SIZE = 0x10000000

ARG = dict(x=0, k=8, v=16, wq=24, wo=32, wg=48, wu=56, wd=64, c=72, wmod=80, out=88, dbg=96, ws=104)
SIZE = dict(x=2621440, k=16777216, v=16777216, wq=5242880, wo=5242880, wg=2211840, wu=2211840, wd=2211840,
            c=1280, wmod=4915200, out=2621440, ws=WS_SIZE)

LOG2E = 1.4426950408889634
QSCALE = LOG2E * 128 ** -0.5


def f2u(x): return '0x%08x' % struct.unpack('<I', struct.pack('<f', x))[0]


sW, sX, sR = 3, 4, 5
SRD_WS, SRD_A, SRD_B, SRD_C, SRD_D = 8, 12, 16, 20, 24
sT = 28
sSTAMP = 48
NSGPR = 64

OPT = dict(stamp=False)


def load_srd(b, srd, name):
    b('s_load_dwordx2 %s, s[0:1], %d' % (s(srd, 2), ARG[name]))
    b('s_mov_b32 %s, %d' % (s(srd + 2), SIZE[name]))
    b('s_mov_b32 %s, 0x20000' % s(srd + 3))


def stamp_begin(b):
    if OPT['stamp']:
        b('s_memrealtime %s' % s(sSTAMP, 2))


def stamp_end(b, kidx, lab, vt=0):
    if not OPT['stamp']: return
    b('s_waitcnt vmcnt(0)')
    b('s_memrealtime %s' % s(sSTAMP + 2, 2))
    b('s_cmp_lg_u32 %s, 0' % s(sW))
    b('s_cbranch_scc1 %s' % lab)
    b('s_waitcnt lgkmcnt(0)')
    for i in range(4): b('v_mov_b32 %s, %s' % (v(vt + i), s(sSTAMP + i)))
    b('s_lshl_b32 %s, s2, 4' % s(sT))
    b('s_add_u32 %s, %s, %d' % (s(sT), s(sT), WS_STAMP + kidx * 16384))
    b('v_mov_b32 %s, 0' % v(vt + 4))
    b('buffer_store_dwordx4 %s, %s, %s, %s offen' % (v(vt, 4), v(vt + 4), s(SRD_WS, 4), s(sT)))
    b.label(lab)


def bf16_round(b, dst, src):
    b('v_cvt_pk_bf16_f32 %s, %s, %s' % (v(dst), v(src), v(src)))
    b('v_lshlrev_b32 %s, 16, %s' % (v(dst), v(dst)))


def wave_id(b, vt):
    b('v_lshrrev_b32 %s, 6, v0' % v(vt))
    b('v_readfirstlane_b32 %s, %s' % (s(sW), v(vt)))


def gen_k0(M):
    name = 'prep_kernel'
    p = Block('entry')
    stamp_begin(p)
    p('s_cmp_ge_u32 s2, 368')
    p('s_cbranch_scc1 L0_end')
    load_srd(p, SRD_WS, 'ws')
    load_srd(p, SRD_A, 'wmod')
    load_srd(p, SRD_B, 'c')
    load_srd(p, SRD_C, 'x')
    wave_id(p, 1)
    p('s_cmp_ge_u32 s2, 240')
    p('s_cbranch_scc1 L0_ln')
    g = Block('gemv')
    t0, t1, t2, t3 = sT, sT + 1, sT + 2, sT + 3
    g('s_mul_i32 %s, s2, 1093' % s(t0))
    g('s_lshr_b32 %s, %s, 16' % (s(t0), s(t0)))
    g('s_mul_i32 %s, %s, 60' % (s(t1), s(t0)))
    g('s_sub_u32 %s, s2, %s' % (s(t1), s(t1)))
    g('v_and_b32 v1, 7, v0')
    g('v_lshrrev_b32 v2, 3, v0')
    g('v_mul_u32_u24 v3, 7680, v2')
    g('v_lshl_add_u32 v3, v1, 4, v3')
    g('v_lshlrev_b32 v4, 1, v2')
    g('s_mul_i32 %s, %s, %d' % (s(t2), s(t0), 160 * 7680))
    g('s_lshl_b32 %s, %s, 7' % (s(t3), s(t1)))
    g('s_add_u32 %s, %s, %s' % (s(t2), s(t2), s(t3)))
    g('s_mul_i32 %s, %s, 320' % (s(t3), s(t0)))
    W, C, ACC, T = 8, 28, 36, 44
    for j in range(5):
        g('buffer_load_ushort %s, v4, %s, %s offen offset:%d' % (v(C + j), s(SRD_B, 4), s(t3), 64 * j))
    for j in range(5):
        g('buffer_load_dwordx4 %s, v3, %s, %s offen' % (v(W + 4 * j, 4), s(SRD_A, 4), s(t2)))
        if j < 4: g('s_add_u32 %s, %s, %d' % (s(t2), s(t2), 32 * 7680))
    for j in range(5):
        c = C + j
        g('v_lshlrev_b32 %s, 16, %s' % (v(c), v(c)))
        g('v_mul_f32 %s, %s, %s' % (v(T + j), f2u(-LOG2E), v(c)))
    for j in range(5): g('v_exp_f32 %s, %s' % (v(T + j), v(T + j)))
    for j in range(5): g('v_add_f32 %s, 1.0, %s' % (v(T + j), v(T + j)))
    for j in range(5): g('v_rcp_f32 %s, %s' % (v(T + j), v(T + j)))
    for j in range(5): g('v_mul_f32 %s, %s, %s' % (v(C + j), v(C + j), v(T + j)))
    for j in range(5): bf16_round(g, C + j, C + j)
    for j in range(5):
        for d in range(4):
            w = W + 4 * j + d
            g('v_lshlrev_b32 %s, 16, %s' % (v(T), v(w)))
            g('v_and_b32 %s, 0xffff0000, %s' % (v(T + 1), v(w)))
            if j == 0:
                g('v_mul_f32 %s, %s, %s' % (v(ACC + 2 * d), v(T), v(C)))
                g('v_mul_f32 %s, %s, %s' % (v(ACC + 2 * d + 1), v(T + 1), v(C)))
            else:
                g('v_fmac_f32 %s, %s, %s' % (v(ACC + 2 * d), v(T), v(C + j)))
                g('v_fmac_f32 %s, %s, %s' % (v(ACC + 2 * d + 1), v(T + 1), v(C + j)))
    g('v_mul_u32_u24 v5, 272, v2')
    g('v_lshl_add_u32 v5, v1, 5, v5')
    g('ds_write_b128 v5, %s' % v(ACC, 4))
    g('ds_write_b128 v5, %s offset:16' % v(ACC + 4, 4))
    g('v_and_b32 v6, 3, v0')
    g('v_mul_u32_u24 v6, 272, v6')
    g('v_and_b32 v7, 0xfc, v0')
    g('v_add_u32 v6, v6, v7')
    g('s_waitcnt lgkmcnt(0)')
    g('s_barrier')
    for i in range(8): g('ds_read_b32 %s, v6 offset:%d' % (v(W + i), 1088 * i))
    for i in (0, 2, 4, 6): g('v_add_f32 %s, %s, %s' % (v(W + i), v(W + i), v(W + i + 1)))
    for i in (0, 4): g('v_add_f32 %s, %s, %s' % (v(W + i), v(W + i), v(W + i + 2)))
    g('v_add_f32 %s, %s, %s' % (v(W), v(W), v(W + 4)))
    g('v_add_f32_dpp %s, %s, %s quad_perm:[1,0,3,2] row_mask:0xf bank_mask:0xf' % (v(W + 1), v(W), v(W)))
    g('v_add_f32_dpp %s, %s, %s quad_perm:[2,3,0,1] row_mask:0xf bank_mask:0xf' % (v(W + 2), v(W + 1), v(W + 1)))
    g('s_mul_i32 %s, %s, %d' % (s(t2), s(t0), 3840 * 4))
    g('s_lshl_b32 %s, %s, 8' % (s(t3), s(t1)))
    g('s_add_u32 %s, %s, %s' % (s(t2), s(t2), s(t3)))
    g('s_add_u32 %s, %s, %d' % (s(t2), s(t2), WS_MODP))
    g('buffer_store_dword %s, v7, %s, %s offen' % (v(W + 2), s(SRD_WS, 4), s(t2)))
    g('s_branch L0_fin')

    l = Block('ln1')
    l.label('L0_ln')
    l('s_sub_u32 %s, s2, 240' % s(t0))
    l('v_lshrrev_b32 v1, 4, v0')
    l('v_and_b32 v2, 15, v0')
    l('v_mul_u32_u24 v3, 1280, v1')
    l('v_lshl_add_u32 v3, v2, 4, v3')
    l('s_mul_i32 %s, %s, 20480' % (s(t1), s(t0)))
    XR, XF = 8, 28
    for m in range(5):
        l('buffer_load_dwordx4 %s, v3, %s, %s offen offset:%d' % (v(XR + 4 * m, 4), s(SRD_C, 4), s(t1), 256 * m))
    l('v_lshrrev_b32 v4, 1, v2')
    l('v_lshlrev_b32 v4, 10, v4')
    l('v_and_b32 v5, 1, v2')
    l('v_lshl_add_u32 v4, v5, 9, v4')
    l('v_lshl_add_u32 v4, v1, 4, v4')
    l('s_lshr_b32 %s, %s, 1' % (s(t2), s(t0)))
    l('s_mul_i32 %s, %s, 40960' % (s(t2), s(t2)))
    l('s_and_b32 %s, %s, 1' % (s(t3), s(t0)))
    l('s_lshl_b32 %s, %s, 8' % (s(t3), s(t3)))
    l('s_add_u32 %s, %s, %s' % (s(t2), s(t2), s(t3)))
    l('s_add_u32 %s, %s, %d' % (s(t2), s(t2), WS_XH))
    for i in range(20):
        l('v_lshlrev_b32 %s, 16, %s' % (v(XF + 2 * i), v(XR + i)))
        l('v_and_b32 %s, 0xffff0000, %s' % (v(XF + 2 * i + 1), v(XR + i)))
    S0, S1 = 6, 7

    def rowsum16(blk, r):
        for n in (8, 4, 2, 1):
            blk('v_add_f32_dpp %s, %s, %s row_ror:%d row_mask:0xf bank_mask:0xf' % (v(r), v(r), v(r), n))
    l('v_add_f32 %s, %s, %s' % (v(S0), v(XF), v(XF + 1)))
    l('v_add_f32 %s, %s, %s' % (v(S1), v(XF + 2), v(XF + 3)))
    for i in range(4, 40, 2):
        l('v_add_f32 %s, %s, %s' % (v(S0), v(S0), v(XF + i)))
        l('v_add_f32 %s, %s, %s' % (v(S1), v(S1), v(XF + i + 1)))
    l('v_add_f32 %s, %s, %s' % (v(S0), v(S0), v(S1)))
    rowsum16(l, S0)
    l('v_mul_f32 %s, %s, %s' % (v(S0), f2u(1.0 / 640), v(S0)))
    for i in range(40): l('v_sub_f32 %s, %s, %s' % (v(XF + i), v(XF + i), v(S0)))
    l('v_mul_f32 %s, %s, %s' % (v(S0), v(XF), v(XF)))
    l('v_mul_f32 %s, %s, %s' % (v(S1), v(XF + 1), v(XF + 1)))
    for i in range(2, 40, 2):
        l('v_fmac_f32 %s, %s, %s' % (v(S0), v(XF + i), v(XF + i)))
        l('v_fmac_f32 %s, %s, %s' % (v(S1), v(XF + i + 1), v(XF + i + 1)))
    l('v_add_f32 %s, %s, %s' % (v(S0), v(S0), v(S1)))
    rowsum16(l, S0)
    l('v_mov_b32 %s, %s' % (v(S1), f2u(1e-5)))
    l('v_fmac_f32 %s, %s, %s' % (v(S1), f2u(1.0 / 640), v(S0)))
    l('v_rsq_f32 %s, %s' % (v(S1), v(S1)))
    for i in range(40): l('v_mul_f32 %s, %s, %s' % (v(XF + i), v(XF + i), v(S1)))
    for i in range(20): l('v_cvt_pk_f16_f32 %s, %s, %s' % (v(XR + i), v(XF + 2 * i), v(XF + 2 * i + 1)))
    for m in range(5):
        l('buffer_store_dwordx4 %s, v4, %s, %s offen' % (v(XR + 4 * m, 4), s(SRD_WS, 4), s(t2)))
        if m < 4: l('s_add_u32 %s, %s, 8192' % (s(t2), s(t2)))
    e = Block('exit')
    e.label('L0_fin')
    stamp_end(e, 0, 'L0_end0')
    e.label('L0_end')
    e('s_endpgm')
    fix_paths([[p, g, e], [p, l, e]])
    M.kernel(name, [p, g, l, e], 72, NSGPR, 72)
    M.add_launch(name, 368, 256, 8704)


def entry(b, endlab, nwg=256):
    stamp_begin(b)
    b('s_cmp_ge_u32 s2, %d' % nwg)
    b('s_cbranch_scc1 %s' % endlab)
    load_srd(b, SRD_WS, 'ws')
    b('s_and_b32 %s, s2, 7' % s(sX))
    b('s_lshr_b32 %s, s2, 3' % s(sR))
    wave_id(b, 1)


def modtab_issue(b, vecs, R, vq):
    nq = 160 * len(vecs)
    rounds = (nq + 255) // 256
    b('v_lshlrev_b32 %s, 4, v0' % v(vq))
    for rd in range(rounds):
        for pt in range(4):
            off = WS_MODP + pt * 15360 + vecs[0] * 2560 + rd * 4096
            b('s_mov_b32 %s, %d' % (s(sT + pt), off))
            b('buffer_load_dwordx4 %s, %s, %s, %s offen' % (v(R + 16 * rd + 4 * pt, 4), v(vq), s(SRD_WS, 4), s(sT + pt)))
    return rounds


def modtab_finish(b, vecs, R, vq, lds_base, plus1, scale, vt):
    nq = 160 * len(vecs)
    rounds = (nq + 255) // 256
    for rd in range(rounds):
        r = R + 16 * rd
        for e in range(4):
            b('v_add_f32 %s, %s, %s' % (v(r + e), v(r + e), v(r + 4 + e)))
            b('v_add_f32 %s, %s, %s' % (v(r + 8 + e), v(r + 8 + e), v(r + 12 + e)))
        for e in range(4):
            b('v_add_f32 %s, %s, %s' % (v(r + e), v(r + e), v(r + 8 + e)))
        for e in range(4): bf16_round(b, r + e, r + e)
        b('v_mov_b32 %s, 0' % v(vt))
        for pv in plus1:
            lo = (pv - vecs[0]) * 160 - rd * 256
            hi = lo + 160
            if hi <= 0 or lo >= 256: continue
            b('v_subrev_u32 %s, %d, v0' % (v(vt + 1), lo) if lo >= 0 else 'v_add_u32 %s, %d, v0' % (v(vt + 1), -lo))
            b('v_cmp_gt_u32 vcc, 160, %s' % v(vt + 1))
            b('v_cndmask_b32 %s, %s, 1.0, vcc' % (v(vt), v(vt)))
        for e in range(4): b('v_add_f32 %s, %s, %s' % (v(r + e), v(r + e), v(vt)))
        for e in range(4): bf16_round(b, r + e, r + e)
        if scale is not None:
            for e in range(4): b('v_mul_f32 %s, %s, %s' % (v(r + e), f2u(scale), v(r + e)))
        b('ds_write_b128 %s, %s offset:%d' % (v(vq), v(r, 4), lds_base + rd * 4096))


def lane_fields(b, L, T):
    b('v_and_b32 %s, 63, v0' % v(L))


def calc_dma_off(b, dst, L, stride, T):
    b('v_lshrrev_b32 %s, 4, %s' % (v(T), v(L)))
    b('v_lshlrev_b32 %s, 2, %s' % (v(T + 1), v(T)))
    b('v_xor_b32 %s, %s, %s' % (v(T + 1), v(T + 1), v(L)))
    b('v_and_b32 %s, 15, %s' % (v(T + 1), v(T + 1)))
    b('s_lshl_b32 %s, %s, 4' % (s(sT), s(sW)))
    b('v_add_u32 %s, %s, %s' % (v(T), s(sT), v(T)))
    b('s_mov_b32 %s, %d' % (s(sT), stride))
    b('v_mul_lo_u32 %s, %s, %s' % (v(T), v(T), s(sT)))
    for m in range(4):
        b('v_xor_b32 %s, %d, %s' % (v(dst + m), m, v(T + 1)))
        b('v_lshl_add_u32 %s, %s, 4, %s' % (v(dst + m), v(dst + m), v(T)))
        d = 4 * m * stride - 1024 * m
        if d: b('v_add_u32 %s, %d, %s' % (v(dst + m), d, v(dst + m)))


def calc_tr_addr(b, dst, L, T):
    h, g16, r, sw = T, T + 1, T + 2, T + 3
    b('v_lshrrev_b32 %s, 5, %s' % (v(h), v(L)))
    b('v_bfe_u32 %s, %s, 4, 1' % (v(g16), v(L)))
    b('v_bfe_u32 %s, %s, 2, 2' % (v(r), v(L)))
    b('v_and_b32 %s, 1, %s' % (v(sw), v(L)))
    b('v_lshl_add_u32 %s, %s, 1, %s' % (v(g16), v(g16), v(sw)))
    b('v_lshlrev_b32 %s, 1, %s' % (v(sw), v(h)))
    b('v_xor_b32 %s, %s, %s' % (v(g16), v(g16), v(sw)))
    b('v_lshl_add_u32 %s, %s, 2, %s' % (v(g16), v(r), v(g16)))
    b('v_lshl_add_u32 %s, %s, 3, %s' % (v(h), v(h), v(r)))
    b('v_lshlrev_b32 %s, 8, %s' % (v(h), v(h)))
    b('v_bfe_u32 %s, %s, 1, 1' % (v(sw), v(L)))
    b('v_lshl_add_u32 %s, %s, 3, %s' % (v(h), v(sw), v(h)))
    for dt in range(4):
        for sec in range(2):
            d = dst + 2 * dt + sec
            b('v_xor_b32 %s, %d, %s' % (v(d), (dt << 2) | sec, v(g16)))
            b('v_lshl_add_u32 %s, %s, 4, %s' % (v(d), v(d), v(h)))
            if sec: b('v_add_u32 %s, 1024, %s' % (v(d), v(d)))


def calc_k_addr(b, dst, L, T):
    key, sg, h = T, T + 1, T + 2
    b('v_and_b32 %s, 19, %s' % (v(key), v(L)))
    b('v_bfe_u32 %s, %s, 2, 1' % (v(sg), v(L)))
    b('v_lshl_add_u32 %s, %s, 3, %s' % (v(key), v(sg), v(key)))
    b('v_bfe_u32 %s, %s, 3, 1' % (v(sg), v(L)))
    b('v_lshl_add_u32 %s, %s, 2, %s' % (v(key), v(sg), v(key)))
    b('v_and_b32 %s, 3, %s' % (v(sg), v(key)))
    b('v_bfe_u32 %s, %s, 2, 2' % (v(h), v(key)))
    b('v_lshl_add_u32 %s, %s, 2, %s' % (v(sg), v(sg), v(h)))
    b('v_lshrrev_b32 %s, 5, %s' % (v(h), v(L)))
    b('v_xor_b32 %s, %s, %s' % (v(sg), v(sg), v(h)))
    b('v_lshlrev_b32 %s, 8, %s' % (v(key), v(key)))
    for st in range(8):
        b('v_xor_b32 %s, %d, %s' % (v(dst + st), 2 * st, v(sg)))
        b('v_lshl_add_u32 %s, %s, 4, %s' % (v(dst + st), v(dst + st), v(key)))


def I(text, tag=None): return Ins(text, tag)


MF = 'v_mfma_f32_32x32x16_bf16'


A_LDS_MOD = 131072
A_LDS_FLAG = A_LDS_MOD + 8192
A_LDS = A_LDS_FLAG + 64
XRING = 16


def gen_phaseA(M):
    name = 'attn_kernel'
    V = Alloc(1, 256)
    L = V()
    T = V(8, 4)
    TR = V(16)
    VDW = V(4)
    VDK = V(4)
    XOFF = V()
    MADDR = V()
    mark = V.p
    H = V(16, 4)
    MA = V(32, 4)
    X = V(8 * XRING, 4)
    V.p = mark
    KA = V(16)
    LS = V(4)
    Q = V(64, 4)
    S = [V(16, 4), V(16, 4)]
    P = [V(8, 4), V(8, 4)]
    NEG = [V(16, 4), V(16, 4)]
    OT = V(16, 4)
    ACC = 0
    WA = 128
    KF = [128, 160]
    VF = [192, 224]
    sM0, sKV, sWQ, sXB, sMODE = 52, 53, 54, 55, 56

    p = Block('A.entry')
    entry(p, 'LA_end')
    load_srd(p, SRD_A, 'wq')
    load_srd(p, SRD_B, 'k')
    load_srd(p, SRD_C, 'v')
    lane_fields(p, L, T)
    p('s_mov_b32 %s, 0' % s(sMODE))
    p('s_lshl_b32 %s, %s, 12' % (s(sM0), s(sW)))
    p('s_lshl_b32 %s, %s, 8' % (s(sWQ), s(sR)))
    p('s_lshl_b32 %s, %s, 19' % (s(sKV), s(sR)))
    p('s_add_u32 %s, %s, %d' % (s(sKV), s(sKV), 1536 * 256))
    p('s_lshl_b32 %s, %s, 2' % (s(sXB), s(sX)))
    p('s_add_u32 %s, %s, %s' % (s(sXB), s(sXB), s(sW)))
    p('s_mul_i32 %s, %s, %d' % (s(sXB), s(sXB), 2 * 40960))
    p('s_add_u32 %s, %s, %d' % (s(sXB), s(sXB), WS_XH))
    p('v_lshlrev_b32 %s, 4, %s' % (v(XOFF), v(L)))
    MR = H
    assert MA == H + 16
    modtab_issue(p, [0, 1], MR, MADDR)
    calc_dma_off(p, VDW, L, 8192, T)
    calc_dma_off(p, VDK, L, 256, T)

    def dma_chunk(n):
        sl = n % 8
        out = []
        if n < 10:
            srd, vd = SRD_A, VDW
            out.append(I('s_add_u32 %s, %s, %d' % (s(sT + 4), s(sWQ), n * 64 * 8192)))
        else:
            j, isv = (n - 10) // 2, (n - 10) % 2
            srd, vd = (SRD_C if isv else SRD_B), VDK
            out.append(I('s_add_u32 %s, %s, %d' % (s(sT + 4), s(sKV), j * 16384)))
        out.insert(0, I('s_add_u32 m0, %s, %d' % (s(sM0), sl * 16384)))
        for m in range(4):
            out.append(I('buffer_load_dwordx4 %s, %s, %s offen offset:%d lds' % (v(vd + m), s(srd, 4), s(sT + 4), 1024 * m), ('dma', n, [sl])))
        return out

    def xload(u):
        out = []
        for qt in range(2):
            r = X + 8 * (u % XRING) + 4 * qt
            off = qt * 40960 + u * 1024
            out.append(I('s_add_u32 %s, %s, %d' % (s(sT + 5 + qt), s(sXB), off - off % 4096)))
            out.append(I('buffer_load_dwordx4 %s, %s, %s, %s offen offset:%d' % (v(r, 4), v(XOFF), s(SRD_WS, 4), s(sT + 5 + qt), off % 4096)))
        return out

    def trread(dst, n, step, dt):
        sl = n % 8
        base = TR + (8 if sl >= 4 else 0)
        off = (sl % 4) * 16384 + step * 4096
        return [I('ds_read_b64_tr_b16 %s, %s offset:%d' % (a(dst + 2 * sec, 2), v(base + 2 * dt + sec), off), ('rd', n)) for sec in range(2)]

    for u in range(2): p.extend(xload(u))
    p.extend(dma_chunk(0))
    for u in range(2, 8): p.extend(xload(u))
    p.extend(dma_chunk(1))
    for u in range(8, XRING): p.extend(xload(u))
    for n in range(2, 5): p.extend(dma_chunk(n))
    calc_tr_addr(p, TR, L, T)
    for i in range(8): p('v_add_u32 %s, 0x10000, %s' % (v(TR + 8 + i), v(TR + i)))
    p('v_add_u32 %s, %d, %s' % (v(MADDR), A_LDS_MOD, v(MADDR)))
    modtab_finish(p, [0, 1], MR, MADDR, 0, [1], QSCALE, T)
    p('v_lshrrev_b32 %s, 5, %s' % (v(MADDR), v(L)))
    p('v_lshlrev_b32 %s, 5, %s' % (v(MADDR), v(MADDR)))
    p('v_add_u32 %s, %d, %s' % (v(MADDR), A_LDS_MOD, v(MADDR)))
    for i in range(128): p('v_accvgpr_write_b32 %s, 0' % a(ACC + i))
    p.need(0)
    p('s_waitcnt lgkmcnt(0)')
    p('s_barrier')

    def modread(u):
        r = MA + 16 * (u % 2)
        return [I('ds_read_b128 %s, %s offset:%d' % (v(r, 4), v(MADDR), 2560 + 64 * u)),
                I('ds_read_b128 %s, %s offset:%d' % (v(r + 4, 4), v(MADDR), 2560 + 64 * u + 16)),
                I('ds_read_b128 %s, %s offset:%d' % (v(r + 8, 4), v(MADDR), 64 * u)),
                I('ds_read_b128 %s, %s offset:%d' % (v(r + 12, 4), v(MADDR), 64 * u + 16))]

    def modulate(u):
        ma = MA + 16 * (u % 2)
        out = []
        k = 0
        for qt in range(2):
            for d in range(4):
                x = X + 8 * (u % XRING) + 4 * qt + d
                t = T + 2 * (k % 4)
                k += 1
                out.append(I('v_fma_mix_f32 %s, %s, %s, %s op_sel_hi:[1,0,0]' % (v(t), v(x), v(ma + 2 * d), v(ma + 8 + 2 * d))))
                out.append(I('v_fma_mix_f32 %s, %s, %s, %s op_sel:[1,0,0] op_sel_hi:[1,0,0]' % (v(t + 1), v(x), v(ma + 2 * d + 1), v(ma + 8 + 2 * d + 1))))
                out.append(I('v_cvt_pk_bf16_f32 %s, %s, %s' % (v(H + 8 * (u % 2) + 4 * qt + d), v(t), v(t + 1))))
        return out

    q = Block('A.qproj')
    q.extend(modread(0))
    q.extend(modread(1))
    for dt in range(4): q.extend(trread(WA + 4 * dt, 0, 0, dt))
    q.extend(modulate(0))
    NU = 40
    for u in range(NU):
        c, st = u // 4, u % 4
        pre = []
        fill = [[] for _ in range(8)]
        if st == 3 and c < 9:
            q.need(c + 1)
            q('s_waitcnt lgkmcnt(0)')
            q('s_barrier')
        if u + 1 < NU:
            lds = []
            for dt in range(4): lds += trread(WA + 16 * ((u + 1) % 2) + 4 * dt, (u + 1) // 4, (u + 1) % 4, dt)
            mod = modulate(u + 1)
            sp = spread(lds, 8, 0, 8)
            sm = spread(mod, 8, 0, 8)
            for i in range(8): fill[i] += sp[i] + sm[i]
        if u + 2 < NU:
            mr = modread(u + 2)
            for i, ins in enumerate(mr): fill[2 * i + 1].append(ins)
        if u + XRING < NU:
            xl = xload(u + XRING)
            fill[0] += xl[:2]
            fill[4] += xl[2:]
        if st == 3 and c < 9:
            d = dma_chunk(c + 5)
            fill[1] += d[:3]
            fill[3].append(d[3]); fill[5].append(d[4]); fill[7].append(d[5])
        mf = []
        for dt in range(4):
            for qt in range(2):
                acc = a(ACC + 32 * dt + 16 * qt, 16)
                mf.append('%s %s, %s, %s, %s' % (MF, acc, a(WA + 16 * (u % 2) + 4 * dt, 4), v(H + 8 * (u % 2) + 4 * qt, 4), acc))
        q.extend(interleave(mf, fill))
    calc_k_addr(q, KA, L, T)
    for i in range(8): q('v_add_u32 %s, 0x10000, %s' % (v(KA + 8 + i), v(KA + i)))
    for qt in range(2):
        for dt in range(4):
            for j in range(0, 16, 2):
                t = T + (j % 8)
                q('v_accvgpr_read_b32 %s, %s' % (v(t), a(ACC + 32 * dt + 16 * qt + j)))
                q('v_accvgpr_read_b32 %s, %s' % (v(t + 1), a(ACC + 32 * dt + 16 * qt + j + 1)))
                q('v_cvt_pk_bf16_f32 %s, %s, %s' % (v(Q + 32 * qt + 8 * dt + j // 2), v(t), v(t + 1)))

    def kread(t, st):
        n = 10 + 2 * (t // 2)
        sl = n % 8
        base = KA + (8 if sl >= 4 else 0)
        return I('ds_read_b128 %s, %s offset:%d' % (a(KF[t % 2] + 4 * st, 4), v(base + st), (sl % 4) * 16384 + (t % 2) * 8192), ('rd', n))

    def vreads(t):
        n = 11 + 2 * (t // 2)
        out = []
        for ks in range(2):
            for dt in range(4): out += trread(VF[t % 2] + 16 * ks + 4 * dt, n, 2 * (t % 2) + ks, dt)
        return out

    def qk(t, qt, cinit):
        return ['%s %s, %s, %s, %s' % (MF, v(S[qt], 16), a(KF[t % 2] + 4 * st, 4), v(Q + 32 * qt + 4 * st, 4), cinit if st == 0 else v(S[qt], 16)) for st in range(8)]

    def pv(t, qt):
        out = []
        for ks in range(2):
            for dt in range(4):
                acc = a(ACC + 32 * dt + 16 * qt, 16)
                out.append('%s %s, %s, %s, %s' % (MF, acc, a(VF[t % 2] + 16 * ks + 4 * dt, 4), v(P[qt] + 4 * ks, 4), acc))
        return out

    def softmax(qt):
        sl = [[] for _ in range(16)]
        for j in range(16):
            sl[j].append(I('v_exp_f32 %s, %s' % (v(S[qt] + j), v(S[qt] + j))))
        for j in range(16):
            sl[min(j + 1, 15)].append(I('v_add_f32 %s, %s, %s' % (v(LS + 2 * qt + j % 2), v(LS + 2 * qt + j % 2), v(S[qt] + j))))
        for j in range(0, 16, 2):
            sl[min(j + 2, 15)].append(I('v_cvt_pk_bf16_f32 %s, %s, %s' % (v(P[qt] + j // 2), v(S[qt] + j), v(S[qt] + j + 1))))
        return sl

    st0 = Block('A.att_start')
    st0.label('LA_att')
    for i in range(128): st0('v_accvgpr_write_b32 %s, 0' % a(ACC + i))
    for i in range(4): st0('v_mov_b32 %s, 0' % v(LS + i))
    st0.need(10, 11)
    st0('s_waitcnt lgkmcnt(0)')
    st0('s_barrier')
    for st in range(8): st0.extend([kread(0, st)])
    st0.extend(vreads(0))
    for n in (14, 15, 16, 17): st0.extend(dma_chunk(n))
    st0('s_cmp_lg_u32 %s, 0' % s(sMODE))
    st0('s_cbranch_scc1 LA_havemax')
    mx = Block('A.first_tile_max')
    mx.extend(qk(0, 0, '0'))
    mx.extend(qk(0, 1, '0'))

    def tile_max(b, qt, dst, first):
        r = S[qt]
        if first:
            b('v_max3_f32 %s, %s, %s, %s' % (v(dst), v(r), v(r + 1), v(r + 2)))
            b('v_max_f32 %s, %s, %s' % (v(dst), v(dst), v(r + 3)))
        else:
            b('v_max3_f32 %s, %s, %s, %s' % (v(dst), v(dst), v(r), v(r + 1)))
            b('v_max3_f32 %s, %s, %s, %s' % (v(dst), v(dst), v(r + 2), v(r + 3)))
        for j in range(4, 16, 2):
            b('v_max3_f32 %s, %s, %s, %s' % (v(dst), v(dst), v(r + j), v(r + j + 1)))

    def finish_max(b):
        for qt in range(2):
            b('v_mov_b32 %s, %s' % (v(T + 2 + qt), v(T + qt)))
        for qt in range(2):
            b('v_permlane32_swap_b32 %s, %s' % (v(T + qt), v(T + 2 + qt)))
        for qt in range(2):
            b('v_max_f32 %s, %s, %s' % (v(T + qt), v(T + qt), v(T + 2 + qt)))
        for qt in range(2):
            for j in range(16): b('v_sub_f32 %s, 0, %s' % (v(NEG[qt] + j), v(T + qt)))
    tile_max(mx, 0, T, True)
    tile_max(mx, 1, T + 1, True)
    finish_max(mx)

    lp = Block('A.att_loop')
    lp.label('LA_havemax')
    lp.extend(qk(0, 0, v(NEG[0], 16)))
    nxt = 18
    for t in range(16):
        fill = [[] for _ in range(32)]
        if t + 1 < 16:
            if (t + 1) % 2 == 0:
                n = 10 + (t + 1)
                lp.need(n, n + 1)
                lp('s_waitcnt lgkmcnt(0)')
                lp('s_barrier')
                dm = []
                for c in (nxt, nxt + 1):
                    if c < 26: dm.append(dma_chunk(c))
                nxt += 2
                for i, d in enumerate(dm):
                    base = 12 + 16 * i
                    fill[base] += d[:3]
                    fill[base + 1].append(d[3]); fill[base + 2].append(d[4]); fill[base + 3].append(d[5])
            rd = [kread(t + 1, st) for st in range(8)]
            vr = vreads(t + 1)
            for i, ins in enumerate(rd): fill[i].insert(0, ins)
            slots = [9, 10, 11, 11] + list(range(16, 28))
            for i, ins in enumerate(vr): fill[slots[i]].insert(0, ins)
        s0, s1 = softmax(0), softmax(1)
        for i in range(16):
            fill[i] += s0[i]
            fill[16 + i] += s1[i]
        mfs = qk(t, 1, v(NEG[1], 16)) + (pv(t - 1, 1) if t > 0 else [None] * 8) + (qk(t + 1, 0, v(NEG[0], 16)) if t < 15 else [None] * 8) + pv(t, 0)
        for m, f in zip(mfs, fill):
            if m: lp(m)
            lp.extend(f)
    lp.extend(pv(15, 1))
    for qt in range(2):
        lp('v_add_f32 %s, %s, %s' % (v(T + qt), v(LS + 2 * qt), v(LS + 2 * qt + 1)))
    for qt in range(2): lp('v_mov_b32 %s, %s' % (v(T + 2 + qt), v(T + qt)))
    for qt in range(2): lp('v_permlane32_swap_b32 %s, %s' % (v(T + qt), v(T + 2 + qt)))
    for qt in range(2): lp('v_add_f32 %s, %s, %s' % (v(T + qt), v(T + qt), v(T + 2 + qt)))
    lp('v_max_f32 %s, %s, %s' % (v(T + 2), v(T), v(T + 1)))
    lp('v_add_f32 %s, %s, %s' % (v(T + 3), v(T), v(T + 1)))
    lp('v_mov_b32 %s, %s' % (v(T + 4), f2u(2.0 ** 60)))
    lp('v_cmp_nle_f32 vcc, %s, %s' % (v(T + 3), v(T + 4)))
    lp('s_cmp_lg_u64 vcc, 0')
    lp('s_cselect_b32 %s, 1, 0' % s(sT))
    lp('v_mov_b32 %s, %s' % (v(T + 5), s(sT)))
    lp('s_lshl_b32 %s, %s, 2' % (s(sT + 1), s(sW)))
    lp('s_add_u32 %s, %s, %d' % (s(sT + 1), s(sT + 1), A_LDS_FLAG))
    lp('v_mov_b32 %s, %s' % (v(T + 6), s(sT + 1)))
    lp('ds_write_b32 %s, %s' % (v(T + 6), v(T + 5)))
    lp('v_mov_b32 %s, %d' % (v(T + 6), A_LDS_FLAG))
    lp('s_waitcnt lgkmcnt(0)')
    lp('s_barrier')
    lp('ds_read_b128 %s, %s' % (v(OT, 4), v(T + 6)))
    for qt in range(2): lp('v_rcp_f32 %s, %s' % (v(T + qt), v(T + qt)))
    lp('v_or_b32 %s, %s, %s' % (v(OT), v(OT), v(OT + 1)))
    lp('v_or_b32 %s, %s, %s' % (v(OT + 2), v(OT + 2), v(OT + 3)))
    lp('v_or_b32 %s, %s, %s' % (v(OT), v(OT), v(OT + 2)))
    lp('v_readfirstlane_b32 %s, %s' % (s(sT), v(OT)))
    lp('s_andn2_b32 %s, %s, %s' % (s(sT), s(sT), s(sMODE)))
    lp('s_cbranch_scc1 LA_fallback')

    ep = Block('A.epilogue')
    ep('s_lshl_b32 %s, %s, 2' % (s(sT), s(sX)))
    ep('s_add_u32 %s, %s, %s' % (s(sT), s(sT), s(sW)))
    ep('s_lshl_b32 %s, %s, 19' % (s(sT), s(sT)))
    ep('s_lshl_b32 %s, %s, 13' % (s(sT + 1), s(sR)))
    ep('s_add_u32 %s, %s, %s' % (s(sT), s(sT), s(sT + 1)))
    ep('s_add_u32 %s, %s, %d' % (s(sT), s(sT), WS_O))
    k = 0
    for qt in range(2):
        for dt in range(4):
            for hf in range(2):
                o = OT + 4 * (k % 4)
                k += 1
                for j in range(0, 8, 2):
                    t = S[0] + 2 * ((4 * k + j // 2) % 8)
                    src = ACC + 32 * dt + 16 * qt + 8 * hf + j
                    ep('v_accvgpr_read_b32 %s, %s' % (v(t), a(src)))
                    ep('v_accvgpr_read_b32 %s, %s' % (v(t + 1), a(src + 1)))
                    ep('v_mul_f32 %s, %s, %s' % (v(t), v(t), v(T + qt)))
                    ep('v_mul_f32 %s, %s, %s' % (v(t + 1), v(t + 1), v(T + qt)))
                    ep('v_cvt_pk_bf16_f32 %s, %s, %s' % (v(o + j // 2), v(t), v(t + 1)))
                ks = 2 * dt + hf
                if ks % 4 == 0:
                    ep('s_add_u32 %s, %s, %d' % (s(sT + 1), s(sT), qt * 262144 + ks * 1024))
                ep('buffer_store_dwordx4 %s, %s, %s, %s offen offset:%d' % (v(o, 4), v(XOFF), s(SRD_WS, 4), s(sT + 1), (ks % 4) * 1024))
    stamp_end(ep, 1, 'LA_end0', S[0])
    ep.label('LA_end')
    ep('s_endpgm')

    fb = Block('A.fallback_pre')
    fb.label('LA_fallback')
    fb('s_mov_b32 %s, 1' % s(sMODE))
    fb('s_mov_b32 %s, 0' % s(sT + 8))
    fb('v_mov_b32 %s, 0xff800000' % v(T))
    fb('v_mov_b32 %s, 0xff800000' % v(T + 1))
    fl = Block('A.fallback_loop')
    fl.label('LA_fb_loop')
    fl('s_barrier')
    fl('s_add_u32 m0, %s, %d' % (s(sM0), 2 * 16384))
    fl('s_add_u32 %s, %s, %s' % (s(sT + 4), s(sKV), s(sT + 8)))
    for m in range(4):
        fl('buffer_load_dwordx4 %s, %s, %s offen offset:%d lds' % (v(VDK + m), s(SRD_B, 4), s(sT + 4), 1024 * m))
    fl('s_waitcnt vmcnt(0)')
    fl('s_barrier')
    for t in range(2):
        for st in range(8):
            ins = kread(t, st)
            ins.tag = None
            fl.extend([ins])
        fl.extend(qk(t, 0, '0'))
        fl.extend(qk(t, 1, '0'))
        tile_max(fl, 0, T, False)
        tile_max(fl, 1, T + 1, False)
    fl('s_add_u32 %s, %s, 16384' % (s(sT + 8), s(sT + 8)))
    fl('s_cmp_lt_u32 %s, %d' % (s(sT + 8), 8 * 16384))
    fl('s_cbranch_scc1 LA_fb_loop')
    fe = Block('A.fallback_post')
    finish_max(fe)
    fe('s_barrier')
    fe.reset()
    for n in range(10, 14): fe.extend(dma_chunk(n))
    fe('s_branch LA_att')

    fix_paths([[p, q, st0, mx, lp, ep], [p, q, st0, mx, lp, fb, fl, fl, fe, st0, lp, ep]], verbose=OPT.get('verbose'))
    M.kernel(name, [p, q, st0, mx, lp, ep, fb, fl, fe], 512, NSGPR, 256)
    M.add_launch(name, 256, 256, A_LDS)


def gen_phaseBD(M, which):
    isB = which == 'B'
    name = 'oproj_kernel' if isB else 'down_kernel'
    lab = 'L' + which
    wname = 'wo' if isB else 'wd'
    NST = 11 if isB else 5
    NCH = 64 if isB else 27
    KS_TOT = 256 if isB else 108
    ACT = WS_O if isB else WS_HH
    PART = WS_PB if isB else WS_PD
    RING = 16
    NS = 4
    V = Alloc(1, 256)
    L = V(); T = V(8, 4); TR = V(16); VDW = V(4); XOFF = V(); EX = V(); PO = V()
    ACCV = V(128, 4)
    RB = V(64, 4)
    WA, XA = 0, 32
    sM0, sWB, sXB, sMT, sNT, sKS, sCH = 52, 53, 54, 55, 56, 57, 58

    p = Block(which + '.entry')
    entry(p, lab + '_end')
    p('s_cmp_ge_u32 %s, 30' % s(sR))
    p('s_cbranch_scc1 %s_end' % lab)
    load_srd(p, SRD_A, wname)
    lane_fields(p, L, T)
    p('s_mul_i32 %s, %s, 6554' % (s(sKS), s(sR)))
    p('s_lshr_b32 %s, %s, 16' % (s(sKS), s(sKS)))
    p('s_mul_i32 %s, %s, 10' % (s(sT), s(sKS)))
    p('s_sub_u32 %s, %s, %s' % (s(sT), s(sR), s(sT)))
    p('s_and_b32 %s, %s, 1' % (s(sMT), s(sT)))
    p('s_lshr_b32 %s, %s, 1' % (s(sNT), s(sT)))
    p('s_lshl_b32 %s, %s, 12' % (s(sM0), s(sW)))
    p('s_mul_i32 %s, %s, %d' % (s(sWB), s(sKS), 2 * NST * 64 * 1280))
    p('s_lshl_b32 %s, %s, 8' % (s(sT), s(sNT)))
    p('s_add_u32 %s, %s, %s' % (s(sWB), s(sWB), s(sT)))
    p('s_lshr_b32 %s, %s, 1' % (s(sT), s(sW)))
    p('s_lshl_b32 %s, %s, 1' % (s(sCH), s(sKS)))
    p('s_add_u32 %s, %s, %s' % (s(sCH), s(sCH), s(sT)))
    p('s_mul_i32 %s, %s, %d' % (s(sCH), s(sCH), NST))
    p('s_and_b32 %s, %s, 1' % (s(sT), s(sW)))
    p('s_lshl_b32 %s, %s, 2' % (s(sXB), s(sX)))
    p('s_lshl_b32 %s, %s, 1' % (s(sT + 1), s(sMT)))
    p('s_add_u32 %s, %s, %s' % (s(sXB), s(sXB), s(sT + 1)))
    p('s_add_u32 %s, %s, %s' % (s(sXB), s(sXB), s(sT)))
    p('s_mul_i32 %s, %s, %d' % (s(sXB), s(sXB), 2 * KS_TOT * 1024))
    p('s_add_u32 %s, %s, %d' % (s(sXB), s(sXB), ACT))
    p('v_lshlrev_b32 %s, 4, %s' % (v(XOFF), v(L)))
    calc_dma_off(p, VDW, L, 1280, T)

    def dma_stage(c):
        sl = c % NS
        out = []
        for kh in range(2):
            out.append(I('s_add_u32 m0, %s, %d' % (s(sM0), sl * 32768 + kh * 16384)))
            out.append(I('s_add_u32 %s, %s, %d' % (s(sT + 4), s(sWB), (kh * NST + c) * 64 * 1280)))
            for m in range(4):
                out.append(I('buffer_load_dwordx4 %s, %s, %s offen offset:%d lds' % (v(VDW + m), s(SRD_A, 4), s(sT + 4), 1024 * m), ('dma', c, [sl])))
        return out

    def xstage_addr(c):
        return [I('s_add_u32 %s, %s, %d' % (s(sT + 8), s(sCH), c)),
                I('s_min_u32 %s, %s, %d' % (s(sT + 8), s(sT + 8), NCH - 1)),
                I('s_lshl_b32 %s, %s, 12' % (s(sT + 8), s(sT + 8))),
                I('s_add_u32 %s, %s, %s' % (s(sT + 8), s(sT + 8), s(sXB))),
                I('s_add_u32 %s, %s, %d' % (s(sT + 9), s(sT + 8), KS_TOT * 1024))]

    def xload(u):
        out = xstage_addr(u // 4) if u % 4 == 0 else []
        for qt in range(2):
            out.append(I('buffer_load_dwordx4 %s, %s, %s, %s offen offset:%d' % (a(XA + 8 * (u % RING) + 4 * qt, 4), v(XOFF), s(SRD_WS, 4), s(sT + 8 + qt), (u % 4) * 1024)))
        return out

    def trread(dst, c, step, dt):
        sl = c % NS
        base = TR + (8 if sl >= 2 else 0)
        off = (sl % 2) * 32768 + step * 4096
        return [I('ds_read_b64_tr_b16 %s, %s offset:%d' % (a(dst + 2 * sec, 2), v(base + 2 * dt + sec), off), ('rd', c)) for sec in range(2)]
    NU = NST * 4
    p.extend(dma_stage(0))
    for u in range(4): p.extend(xload(u))
    p.extend(dma_stage(1))
    for u in range(4, 8): p.extend(xload(u))
    p.extend(dma_stage(2))
    for u in range(8, 12): p.extend(xload(u))
    calc_tr_addr(p, TR, L, T)
    p('s_lshr_b32 %s, %s, 1' % (s(sT), s(sW)))
    p('s_lshl_b32 %s, %s, 14' % (s(sT), s(sT)))
    for i in range(8): p('v_add_u32 %s, %s, %s' % (v(TR + i), s(sT), v(TR + i)))
    for i in range(8): p('v_add_u32 %s, 0x10000, %s' % (v(TR + 8 + i), v(TR + i)))
    for i in range(128): p('v_mov_b32 %s, 0' % v(ACCV + i))
    p.need(0)
    p('s_barrier')
    LOOK = 12
    q = Block(which + '.loop')
    for dt in range(4): q.extend(trread(WA + 4 * dt, 0, 0, dt))
    for u in range(NU):
        c, st = u // 4, u % 4
        fill = [[] for _ in range(8)]
        if st == 3 and c + 1 < NST:
            q.need(c + 1)
            q('s_waitcnt lgkmcnt(0)')
            q('s_barrier')
        if u + 1 < NU:
            lds = []
            for dt in range(4): lds += trread(WA + 16 * ((u + 1) % 2) + 4 * dt, (u + 1) // 4, (u + 1) % 4, dt)
            for i in range(8): fill[i].append(lds[i])
        if u + LOOK < NU:
            xl = xload(u + LOOK)
            fill[0] += xl[:-1]
            fill[4].append(xl[-1])
        if c + 3 < NST:
            d = dma_stage(c + 3)
            grp = [d[0:3], [d[3]], [d[4]], [d[5]], d[6:9], [d[9]], [d[10]], [d[11]]]
            fill[2] += grp[2 * st]
            fill[6] += grp[2 * st + 1]
        mf = []
        for dt in range(4):
            for qt in range(2):
                acc = v(ACCV + 32 * dt + 16 * qt, 16)
                mf.append('%s %s, %s, %s, %s' % (MF, acc, a(WA + 16 * (u % 2) + 4 * dt, 4), a(XA + 8 * (u % RING) + 4 * qt, 4), acc))
        q.extend(interleave(mf, fill))
    e = Block(which + '.epilogue')
    e('s_barrier')
    e('s_lshl_b32 %s, %s, 14' % (s(sT), s(sW)))
    e('v_add_u32 %s, %s, %s' % (v(EX), s(sT), v(XOFF)))
    e('v_and_b32 %s, 31, %s' % (v(T), v(L)))
    e('v_lshrrev_b32 %s, 3, %s' % (v(T + 1), v(T)))
    e('v_mul_u32_u24 %s, 20480, %s' % (v(T + 1), v(T + 1)))
    e('v_and_b32 %s, 7, %s' % (v(T), v(T)))
    e('v_lshl_add_u32 %s, %s, 4, %s' % (v(T + 1), v(T), v(T + 1)))
    e('v_lshrrev_b32 %s, 5, %s' % (v(T), v(L)))
    e('v_lshl_add_u32 %s, %s, 8, %s' % (v(PO), v(T), v(T + 1)))
    e('s_mul_i32 %s, %s, 3' % (s(sT + 1), s(sX)))
    e('s_add_u32 %s, %s, %s' % (s(sT + 1), s(sT + 1), s(sKS)))
    e('s_lshl_b32 %s, %s, 3' % (s(sT + 1), s(sT + 1)))
    e('s_lshl_b32 %s, %s, 2' % (s(sT + 2), s(sMT)))
    e('s_add_u32 %s, %s, %s' % (s(sT + 1), s(sT + 1), s(sT + 2)))
    e('s_and_b32 %s, %s, 1' % (s(sT + 2), s(sW)))
    e('s_lshl_b32 %s, %s, 1' % (s(sT + 2), s(sT + 2)))
    e('s_add_u32 %s, %s, %s' % (s(sT + 1), s(sT + 1), s(sT + 2)))
    e('s_lshr_b32 %s, %s, 1' % (s(sT + 2), s(sW)))
    e('s_add_u32 %s, %s, %s' % (s(sT + 1), s(sT + 1), s(sT + 2)))
    e('s_mul_i32 %s, %s, %d' % (s(sT + 1), s(sT + 1), 4 * 20480))
    e('s_lshl_b32 %s, %s, 12' % (s(sT + 3), s(sNT)))
    e('s_add_u32 %s, %s, %s' % (s(sT + 1), s(sT + 1), s(sT + 3)))
    e('s_add_u32 %s, %s, %d' % (s(sT + 1), s(sT + 1), PART))
    e('s_cmp_eq_u32 %s, 0' % s(sT + 2))
    e('s_cbranch_scc1 %s_kh0' % lab)
    halves = []
    for kh in (1, 0):
        hb = Block(which + '.exch%d' % kh)
        if kh == 0: hb.label('%s_kh0' % lab)
        snd = 1 - kh
        for dt in range(4):
            for j4 in range(4):
                hb('ds_write_b128 %s, %s offset:%d' % (v(EX), v(ACCV + 32 * dt + 16 * snd + 4 * j4, 4), (4 * dt + j4) * 1024))
        hb('v_xor_b32 %s, 0x8000, %s' % (v(EX), v(EX)))
        hb('s_waitcnt lgkmcnt(0)')
        hb('s_barrier')
        for i in range(16): hb('ds_read_b128 %s, %s offset:%d' % (v(RB + 4 * i, 4), v(EX), i * 1024))
        for dt in range(4):
            for j4 in range(4):
                r = RB + 4 * (4 * dt + j4)
                for ee in range(4):
                    hb('v_add_f32 %s, %s, %s' % (v(r + ee), v(r + ee), v(ACCV + 32 * dt + 16 * kh + 4 * j4 + ee)))
                hb('buffer_store_dwordx4 %s, %s, %s, %s offen offset:%d' % (v(r, 4), v(PO), s(SRD_WS, 4), s(sT + 1), (8 * dt + 4 * (j4 // 2) + j4 % 2) * 128))
        if kh == 1: hb('s_branch %s_fin' % lab)
        halves.append(hb)
    z = Block(which + '.exit')
    z.label(lab + '_fin')
    stamp_end(z, 2 if isB else 5, lab + '_end0', T)
    z.label(lab + '_end')
    z('s_endpgm')
    fix_paths([[p, q, e, halves[0], z], [p, q, e, halves[1], z]], verbose=OPT.get('verbose'))
    M.kernel(name, [p, q, e, halves[0], halves[1], z], 512, NSGPR, 256)
    M.add_launch(name, 256, 256, 131072)


def gen_phaseRE(M, which):
    isR = which == 'R'
    name = 'ln2_kernel' if isR else 'final_kernel'
    lab = 'L' + which
    PART = WS_PB if isR else WS_PD
    V = Alloc(1, 256)
    T = V(8, 4); TQ = V(); XO = V(); MO = V(); HO = V()
    MR = V(32, 4)
    PR = V(60, 4)
    XR = V(10, 2)
    G = V(20, 4); A2 = V(20, 4); B2 = V(20, 4)
    LDS_RED = 12288
    p = Block(which)
    entry(p, lab + '_end')
    load_srd(p, SRD_A, 'x' if isR else 'out')
    vecs = [2, 3, 4] if isR else [5]
    modtab_issue(p, vecs, MR, TQ)
    p('s_mul_i32 %s, %s, 96' % (s(sT + 4), s(sX)))
    p('s_add_u32 %s, %s, %s' % (s(sT + 4), s(sT + 4), s(sR)))
    p('s_mul_i32 %s, %s, 20480' % (s(sT + 4), s(sT + 4)))
    p('s_add_u32 %s, %s, %d' % (s(sT + 4), s(sT + 4), PART))
    for ks in range(3):
        for m in range(5):
            p('s_add_u32 %s, %s, %d' % (s(sT + 5), s(sT + 4), ks * 32 * 20480 + m * 4096))
            p('buffer_load_dwordx4 %s, %s, %s, %s offen' % (v(PR + 20 * ks + 4 * m, 4), v(TQ), s(SRD_WS, 4), s(sT + 5)))
    p('v_and_b32 %s, 7, v0' % v(T))
    p('v_mul_u32_u24 %s, 1280, %s' % (v(XO), v(T)))
    p('v_and_b32 %s, 0xf8, v0' % v(T + 1))
    p('v_add_u32 %s, %s, %s' % (v(XO), v(XO), v(T + 1)))
    p('s_lshl_b32 %s, %s, 5' % (s(sT + 6), s(sX)))
    p('s_add_u32 %s, %s, %s' % (s(sT + 6), s(sT + 6), s(sR)))
    p('s_mul_i32 %s, %s, 10240' % (s(sT + 7), s(sT + 6)))
    p('s_mul_i32 %s, %s, 10240' % (s(sT + 8), s(sT + 6)))
    p('s_add_u32 %s, %s, %d' % (s(sT + 8), s(sT + 8), WS_X1))
    p('v_lshlrev_b32 %s, 3, v0' % v(HO))
    if isR:
        for m in range(5):
            p('buffer_load_dwordx2 %s, %s, %s, %s offen offset:%d' % (v(XR + 2 * m, 2), v(XO), s(SRD_A, 4), s(sT + 7), 256 * m))
    else:
        for m in range(5):
            p('s_add_u32 %s, %s, %d' % (s(sT + 5), s(sT + 8), m * 2048))
            p('buffer_load_dwordx2 %s, %s, %s, %s offen' % (v(XR + 2 * m, 2), v(HO), s(SRD_WS, 4), s(sT + 5)))
    modtab_finish(p, vecs, MR, TQ, 0, [4], None, T)
    p('v_lshlrev_b32 %s, 1, %s' % (v(MO), v(T + 1)))
    p('v_and_b32 %s, 0xf8, v0' % v(MO))
    p('v_lshlrev_b32 %s, 1, %s' % (v(MO), v(MO)))
    p('s_waitcnt lgkmcnt(0)')
    p('s_barrier')
    for m in range(5):
        p('ds_read_b128 %s, %s offset:%d' % (v(G + 4 * m, 4), v(MO), 512 * m))
    if isR:
        for m in range(5):
            p('ds_read_b128 %s, %s offset:%d' % (v(B2 + 4 * m, 4), v(MO), 2560 + 512 * m))
            p('ds_read_b128 %s, %s offset:%d' % (v(A2 + 4 * m, 4), v(MO), 5120 + 512 * m))
    for i in range(20):
        p('v_add_f32 %s, %s, %s' % (v(PR + i), v(PR + i), v(PR + 20 + i)))
    for i in range(20):
        p('v_add_f32 %s, %s, %s' % (v(PR + i), v(PR + i), v(PR + 40 + i)))
    XF = PR + 20
    for i in range(10):
        p('v_lshlrev_b32 %s, 16, %s' % (v(XF + 2 * i), v(XR + i)))
        p('v_and_b32 %s, 0xffff0000, %s' % (v(XF + 2 * i + 1), v(XR + i)))
    for i in range(20):
        p('v_fmac_f32 %s, %s, %s' % (v(XF + i), v(G + i), v(PR + i)))
    for i in range(10):
        p('v_cvt_pk_bf16_f32 %s, %s, %s' % (v(XR + i), v(XF + 2 * i), v(XF + 2 * i + 1)))
    if not isR:
        for m in range(5):
            p('buffer_store_dwordx2 %s, %s, %s, %s offen offset:%d' % (v(XR + 2 * m, 2), v(XO), s(SRD_A, 4), s(sT + 7), 256 * m))
    else:
        for m in range(5):
            p('s_add_u32 %s, %s, %d' % (s(sT + 5), s(sT + 8), m * 2048))
            p('buffer_store_dwordx2 %s, %s, %s, %s offen' % (v(XR + 2 * m, 2), v(HO), s(SRD_WS, 4), s(sT + 5)))
        for i in range(10):
            p('v_lshlrev_b32 %s, 16, %s' % (v(XF + 2 * i), v(XR + i)))
            p('v_and_b32 %s, 0xffff0000, %s' % (v(XF + 2 * i + 1), v(XR + i)))
        S0, S1, RA = T, T + 1, T + 2

        def wgsum(r, slot):
            p('v_add_f32_dpp %s, %s, %s row_ror:8 row_mask:0xf bank_mask:0xf' % (v(r), v(r), v(r)))
            p('v_mov_b32 %s, %s' % (v(T + 3), v(r)))
            p('v_permlane16_swap_b32 %s, %s' % (v(r), v(T + 3)))
            p('v_add_f32 %s, %s, %s' % (v(r), v(r), v(T + 3)))
            p('v_mov_b32 %s, %s' % (v(T + 3), v(r)))
            p('v_permlane32_swap_b32 %s, %s' % (v(r), v(T + 3)))
            p('v_add_f32 %s, %s, %s' % (v(r), v(r), v(T + 3)))
            p('v_and_b32 %s, 7, v0' % v(RA))
            p('v_lshlrev_b32 %s, 4, %s' % (v(RA), v(RA)))
            p('s_lshl_b32 %s, %s, 2' % (s(sT), s(sW)))
            p('v_add_u32 %s, %s, %s' % (v(T + 3), s(sT), v(RA)))
            p('ds_write_b32 %s, %s offset:%d' % (v(T + 3), v(r), LDS_RED + slot * 128))
            p('s_waitcnt lgkmcnt(0)')
            p('s_barrier')
            p('ds_read_b128 %s, %s offset:%d' % (v(T + 4, 4), v(RA), LDS_RED + slot * 128))
            p('v_add_f32 %s, %s, %s' % (v(T + 4), v(T + 4), v(T + 5)))
            p('v_add_f32 %s, %s, %s' % (v(T + 6), v(T + 6), v(T + 7)))
            p('v_add_f32 %s, %s, %s' % (v(r), v(T + 4), v(T + 6)))
        p('v_add_f32 %s, %s, %s' % (v(S0), v(XF), v(XF + 1)))
        p('v_add_f32 %s, %s, %s' % (v(S1), v(XF + 2), v(XF + 3)))
        for i in range(4, 20, 2):
            p('v_add_f32 %s, %s, %s' % (v(S0), v(S0), v(XF + i)))
            p('v_add_f32 %s, %s, %s' % (v(S1), v(S1), v(XF + i + 1)))
        p('v_add_f32 %s, %s, %s' % (v(S0), v(S0), v(S1)))
        wgsum(S0, 0)
        p('v_mul_f32 %s, %s, %s' % (v(S0), f2u(1.0 / 640), v(S0)))
        for i in range(20): p('v_sub_f32 %s, %s, %s' % (v(XF + i), v(XF + i), v(S0)))
        p('v_mul_f32 %s, %s, %s' % (v(S0), v(XF), v(XF)))
        p('v_mul_f32 %s, %s, %s' % (v(S1), v(XF + 1), v(XF + 1)))
        for i in range(2, 20, 2):
            p('v_fmac_f32 %s, %s, %s' % (v(S0), v(XF + i), v(XF + i)))
            p('v_fmac_f32 %s, %s, %s' % (v(S1), v(XF + i + 1), v(XF + i + 1)))
        p('v_add_f32 %s, %s, %s' % (v(S0), v(S0), v(S1)))
        wgsum(S0, 1)
        p('v_mov_b32 %s, %s' % (v(S1), f2u(1e-5)))
        p('v_fmac_f32 %s, %s, %s' % (v(S1), f2u(1.0 / 640), v(S0)))
        p('v_rsq_f32 %s, %s' % (v(S1), v(S1)))
        for i in range(20): p('v_mul_f32 %s, %s, %s' % (v(XF + i), v(XF + i), v(S1)))
        for i in range(20): p('v_fma_f32 %s, %s, %s, %s' % (v(XF + i), v(XF + i), v(A2 + i), v(B2 + i)))
        HR = PR
        for i in range(10): p('v_cvt_pk_bf16_f32 %s, %s, %s' % (v(HR + i), v(XF + 2 * i), v(XF + 2 * i + 1)))
        p('v_lshrrev_b32 %s, 5, v0' % v(T))
        p('v_lshlrev_b32 %s, 10, %s' % (v(HO), v(T)))
        p('v_bfe_u32 %s, v0, 4, 1' % v(T))
        p('v_lshl_add_u32 %s, %s, 9, %s' % (v(HO), v(T), v(HO)))
        p('v_bfe_u32 %s, v0, 3, 1' % v(T))
        p('v_lshl_add_u32 %s, %s, 3, %s' % (v(HO), v(T), v(HO)))
        p('v_and_b32 %s, 7, v0' % v(T))
        p('v_lshl_add_u32 %s, %s, 4, %s' % (v(HO), v(T), v(HO)))
        p('s_lshr_b32 %s, %s, 2' % (s(sT), s(sT + 6)))
        p('s_mul_i32 %s, %s, 40960' % (s(sT), s(sT)))
        p('s_and_b32 %s, %s, 3' % (s(sT + 1), s(sR)))
        p('s_lshl_b32 %s, %s, 7' % (s(sT + 1), s(sT + 1)))
        p('s_add_u32 %s, %s, %s' % (s(sT), s(sT), s(sT + 1)))
        p('s_add_u32 %s, %s, %d' % (s(sT), s(sT), WS_H2))
        for m in range(5):
            p('buffer_store_dwordx2 %s, %s, %s, %s offen' % (v(HR + 2 * m, 2), v(HO), s(SRD_WS, 4), s(sT)))
            if m < 4: p('s_add_u32 %s, %s, 8192' % (s(sT), s(sT)))
    stamp_end(p, 3 if isR else 6, lab + '_end0', T)
    p.label(lab + '_end')
    p('s_endpgm')
    fix_paths([[p]], verbose=OPT.get('verbose'))
    M.kernel(name, [p], (V.hi + 7) // 8 * 8, NSGPR, (V.hi + 7) // 8 * 8)
    M.add_launch(name, 256, 256, LDS_RED + 256)


def gen_phaseC(M):
    name = 'glu_kernel'
    RING = 16
    V = Alloc(1, 256)
    L = V(); T = V(8, 4); TR = V(8); VD = V(4); XOFF = V()
    ACCV = V(128, 4)
    OT = V(16, 4)
    WA, XA = 0, 32
    sM0, sWB, sXB = 52, 53, 54
    p = Block('C.entry')
    entry(p, 'LC_end')
    p('s_cmp_ge_u32 %s, 27' % s(sR))
    p('s_cbranch_scc1 LC_end')
    load_srd(p, SRD_A, 'wg')
    load_srd(p, SRD_B, 'wu')
    lane_fields(p, L, T)
    p('s_lshl_b32 %s, %s, 11' % (s(sM0), s(sW)))
    p('s_lshl_b32 %s, %s, 7' % (s(sWB), s(sR)))
    p('s_lshl_b32 %s, %s, 2' % (s(sXB), s(sX)))
    p('s_add_u32 %s, %s, %s' % (s(sXB), s(sXB), s(sW)))
    p('s_mul_i32 %s, %s, %d' % (s(sXB), s(sXB), 2 * 40960))
    p('s_add_u32 %s, %s, %d' % (s(sXB), s(sXB), WS_H2))
    p('v_lshlrev_b32 %s, 4, %s' % (v(XOFF), v(L)))
    p('v_lshrrev_b32 %s, 3, %s' % (v(T), v(L)))
    p('v_bfe_u32 %s, %s, 4, 1' % (v(T + 1), v(L)))
    p('v_lshlrev_b32 %s, 1, %s' % (v(T + 1), v(T + 1)))
    p('v_xor_b32 %s, %s, %s' % (v(T + 1), v(T + 1), v(L)))
    p('v_and_b32 %s, 7, %s' % (v(T + 1), v(T + 1)))
    p('s_lshl_b32 %s, %s, 4' % (s(sT), s(sW)))
    p('v_add_u32 %s, %s, %s' % (v(T), s(sT), v(T)))
    p('v_mul_u32_u24 %s, 3456, %s' % (v(T), v(T)))
    for isu in range(2):
        for m in range(2):
            d = VD + 2 * isu + m
            p('v_xor_b32 %s, %d, %s' % (v(d), 4 * isu, v(T + 1)))
            p('v_lshl_add_u32 %s, %s, 4, %s' % (v(d), v(d), v(T)))
            if m: p('v_add_u32 %s, %d, %s' % (v(d), 8 * 3456 - 1024, v(d)))

    def dma_stage(c):
        sl = c % 8
        out = [I('s_add_u32 %s, %s, %d' % (s(sT + 4), s(sWB), c * 64 * 3456))]
        for isu in range(2):
            out.append(I('s_add_u32 m0, %s, %d' % (s(sM0), sl * 16384 + isu * 8192)))
            for m in range(2):
                out.append(I('buffer_load_dwordx4 %s, %s, %s offen offset:%d lds' % (v(VD + 2 * isu + m), s(SRD_B if isu else SRD_A, 4), s(sT + 4), 1024 * m), ('dma', c, [sl])))
        return out

    def xload(u):
        out = []
        for qt in range(2):
            off = qt * 40960 + u * 1024
            out.append(I('s_add_u32 %s, %s, %d' % (s(sT + 5 + qt), s(sXB), off - off % 4096)))
            out.append(I('buffer_load_dwordx4 %s, %s, %s, %s offen offset:%d' % (a(XA + 8 * (u % RING) + 4 * qt, 4), v(XOFF), s(SRD_WS, 4), s(sT + 5 + qt), off % 4096)))
        return out

    def trread(dst, c, step, dt):
        sl = c % 8
        base = TR + (4 if sl >= 4 else 0)
        off = (sl % 4) * 16384 + step * 2048
        return [I('ds_read_b64_tr_b16 %s, %s offset:%d' % (a(dst + 2 * sec, 2), v(base + dt), off + 512 * sec), ('rd', c)) for sec in range(2)]
    p.extend(dma_stage(0))
    for u in range(4): p.extend(xload(u))
    p.extend(dma_stage(1))
    for u in range(4, 8): p.extend(xload(u))
    p.extend(dma_stage(2))
    for u in range(8, 15): p.extend(xload(u))
    for c in range(3, 6): p.extend(dma_stage(c))
    p('v_bfe_u32 %s, %s, 4, 1' % (v(T), v(L)))
    p('v_bfe_u32 %s, %s, 3, 1' % (v(T + 1), v(L)))
    p('v_lshl_add_u32 %s, %s, 1, %s' % (v(T + 1), v(T), v(T + 1)))
    p('v_and_b32 %s, 1, %s' % (v(T + 2), v(L)))
    p('v_lshl_add_u32 %s, %s, 1, %s' % (v(T + 1), v(T + 1), v(T + 2)))
    p('v_lshlrev_b32 %s, 13, %s' % (v(T), v(T)))
    p('v_lshrrev_b32 %s, 5, %s' % (v(T + 2), v(L)))
    p('v_lshl_add_u32 %s, %s, 10, %s' % (v(T), v(T + 2), v(T)))
    p('v_bfe_u32 %s, %s, 2, 2' % (v(T + 2), v(L)))
    p('v_lshl_add_u32 %s, %s, 7, %s' % (v(T), v(T + 2), v(T)))
    p('v_bfe_u32 %s, %s, 1, 1' % (v(T + 2), v(L)))
    p('v_lshl_add_u32 %s, %s, 3, %s' % (v(T), v(T + 2), v(T)))
    for dt in range(4):
        p('v_xor_b32 %s, %d, %s' % (v(TR + dt), 2 * dt, v(T + 1)))
        p('v_lshl_add_u32 %s, %s, 4, %s' % (v(TR + dt), v(TR + dt), v(T)))
        p('v_add_u32 %s, 0x10000, %s' % (v(TR + 4 + dt), v(TR + dt)))
    for i in range(128): p('v_mov_b32 %s, 0' % v(ACCV + i))
    p.need(0)
    p('s_barrier')
    q = Block('C.loop')
    for dt in range(4): q.extend(trread(WA + 4 * dt, 0, 0, dt))
    NU, LOOK = 40, 15
    for u in range(NU):
        c, st = u // 4, u % 4
        fill = [[] for _ in range(8)]
        if st == 3 and c + 1 < 10:
            q.need(c + 1)
            q('s_waitcnt lgkmcnt(0)')
            q('s_barrier')
        if u + 1 < NU:
            lds = []
            for dt in range(4): lds += trread(WA + 16 * ((u + 1) % 2) + 4 * dt, (u + 1) // 4, (u + 1) % 4, dt)
            for i in range(8): fill[i].append(lds[i])
        if u + LOOK < NU:
            xl = xload(u + LOOK)
            fill[0] += xl[:2]
            fill[4] += xl[2:]
        if st == 3 and c + 6 < 10:
            d = dma_stage(c + 6)
            fill[1] += d[:3]
            fill[3].append(d[3]); fill[5] += d[4:6]; fill[7].append(d[6])
        mf = []
        for dt in range(4):
            for qt in range(2):
                acc = v(ACCV + 32 * dt + 16 * qt, 16)
                mf.append('%s %s, %s, %s, %s' % (MF, acc, a(WA + 16 * (u % 2) + 4 * dt, 4), a(XA + 8 * (u % RING) + 4 * qt, 4), acc))
        q.extend(interleave(mf, fill))
    q('s_lshl_b32 %s, %s, 2' % (s(sT), s(sX)))
    q('s_add_u32 %s, %s, %s' % (s(sT), s(sT), s(sW)))
    q('s_mul_i32 %s, %s, %d' % (s(sT), s(sT), 2 * 108 * 1024))
    q('s_lshl_b32 %s, %s, 12' % (s(sT + 1), s(sR)))
    q('s_add_u32 %s, %s, %s' % (s(sT), s(sT), s(sT + 1)))
    q('s_add_u32 %s, %s, %d' % (s(sT), s(sT), WS_HH))
    q('s_add_u32 %s, %s, %d' % (s(sT + 1), s(sT), 108 * 1024))
    k = 0
    for dt in range(4):
        for qt in range(2):
            r = ACCV + 32 * dt + 16 * qt
            o = OT + 4 * (k % 4)
            k += 1
            for j in range(8): q('v_mul_f32 %s, %s, %s' % (v(r + j), v(r + j), v(r + 8 + j)))
            for j in range(0, 8, 2): q('v_cvt_pk_bf16_f32 %s, %s, %s' % (v(o + j // 2), v(r + j), v(r + j + 1)))
            q('buffer_store_dwordx4 %s, %s, %s, %s offen offset:%d' % (v(o, 4), v(XOFF), s(SRD_WS, 4), s(sT + qt), dt * 1024))
    stamp_end(q, 4, 'LC_end0', T)
    q.label('LC_end')
    q('s_endpgm')
    fix_paths([[p, q]], verbose=OPT.get('verbose'))
    M.kernel(name, [p, q], 512, NSGPR, 256)
    M.add_launch(name, 256, 256, 131072)


HEADER = open('adaLN_cond__sliding_block_cached__glu_gated_bilinear__prompt.s.ref').read().split('; Override launch')[0] \
    if __name__ == '__main__' else ''


def main():
    out = sys.argv[1]
    for o in sys.argv[2:]:
        k, _, val = o.partition('=')
        OPT[k] = int(val) if val else True
    M = Module()
    gen_k0(M)
    gen_phaseA(M)
    gen_phaseBD(M, 'B')
    gen_phaseRE(M, 'R')
    gen_phaseC(M)
    gen_phaseBD(M, 'D')
    gen_phaseRE(M, 'E')
    open(out, 'w').write(M.render(HEADER))


if __name__ == '__main__':
    main()
```

```python
import sys, struct
from kasm import *

WS_FLAGS = 0
WS_MODP = 0x10000
WS_XH = 0x100000
WS_O = 0x400000
WS_PB = 0x1400000
WS_X1 = 0x2400000
WS_H2 = 0x2800000
WS_HH = 0x2C00000
WS_PD = 0x3400000
WS_STAMP = 0x8000000
WS_SIZE = 0x10000000

ARG = dict(x=0, k=8, v=16, wq=24, wo=32, wg=48, wu=56, wd=64, c=72, wmod=80, out=88, dbg=96, ws=104)
SIZE = dict(x=2621440, k=16777216, v=16777216, wq=5242880, wo=5242880, wg=2211840, wu=2211840, wd=2211840,
            c=1280, wmod=4915200, out=2621440, ws=WS_SIZE)

LOG2E = 1.4426950408889634
QSCALE = LOG2E * 128 ** -0.5


def f2u(x): return '0x%08x' % struct.unpack('<I', struct.pack('<f', x))[0]


sW, sX, sR = 3, 4, 5
SRD_WS, SRD_A, SRD_B, SRD_C, SRD_D = 8, 12, 16, 20, 24
sT = 28
sSTAMP = 48
NSGPR = 96
sPROBE = 64

OPT = dict(stamp=False)


def load_srd(b, srd, name):
    b('s_load_dwordx2 %s, s[0:1], %d' % (s(srd, 2), ARG[name]))
    b('s_mov_b32 %s, %d' % (s(srd + 2), SIZE[name]))
    b('s_mov_b32 %s, 0x20000' % s(srd + 3))


def stamp_begin(b):
    if OPT['stamp']:
        b('s_memrealtime %s' % s(sSTAMP, 2))
    if OPT.get('probe'):
        for i in range(1, 16): b('s_mov_b64 %s, 0' % s(sPROBE + 2 * i, 2))
    probe(b, 0)


def stamp_end(b, kidx, lab, vt=0):
    if not OPT['stamp']: return
    probe(b, 14)
    b('s_waitcnt vmcnt(0)')
    probe(b, 15)
    b('s_memrealtime %s' % s(sSTAMP + 2, 2))
    b('s_cmp_lg_u32 %s, 0' % s(sW))
    b('s_cbranch_scc1 %s' % lab)
    b('s_waitcnt lgkmcnt(0)')
    for i in range(4): b('v_mov_b32 %s, %s' % (v(vt + i), s(sSTAMP + i)))
    b('s_lshl_b32 %s, s2, 4' % s(sT))
    b('s_add_u32 %s, %s, %d' % (s(sT), s(sT), WS_STAMP + kidx * 16384))
    b('v_mov_b32 %s, 0' % v(vt + 4))
    b('buffer_store_dwordx4 %s, %s, %s, %s offen' % (v(vt, 4), v(vt + 4), s(SRD_WS, 4), s(sT)))
    if OPT.get('probe'):
        b('s_lshl_b32 %s, s2, 6' % s(sT))
        b('s_add_u32 %s, %s, %d' % (s(sT), s(sT), WS_STAMP + 0x100000 + kidx * 65536))
        for g in range(4):
            b('s_nop 1')
            for i in range(4): b('v_mov_b32 %s, %s' % (v(vt + i), s(sPROBE + 8 * g + 2 * i)))
            b('buffer_store_dwordx4 %s, %s, %s, %s offen offset:%d' % (v(vt, 4), v(vt + 4), s(SRD_WS, 4), s(sT), 16 * g))
    b.label(lab)


def probe(b, i):
    if OPT.get('probe'):
        b('s_memtime %s' % s(sPROBE + 2 * i, 2))


def bf16_round(b, dst, src):
    b('v_cvt_pk_bf16_f32 %s, %s, %s' % (v(dst), v(src), v(src)))
    b('v_lshlrev_b32 %s, 16, %s' % (v(dst), v(dst)))


def wave_id(b, vt):
    b('v_lshrrev_b32 %s, 6, v0' % v(vt))
    b('v_readfirstlane_b32 %s, %s' % (s(sW), v(vt)))


def gen_k0(M):
    name = 'prep_kernel'
    p = Block('entry')
    stamp_begin(p)
    p('s_cmp_ge_u32 s2, 368')
    p('s_cbranch_scc1 L0_end')
    load_srd(p, SRD_WS, 'ws')
    load_srd(p, SRD_A, 'wmod')
    load_srd(p, SRD_B, 'c')
    load_srd(p, SRD_C, 'x')
    wave_id(p, 1)
    p('s_cmp_ge_u32 s2, 240')
    p('s_cbranch_scc1 L0_ln')
    g = Block('gemv')
    t0, t1, t2, t3 = sT, sT + 1, sT + 2, sT + 3
    g('s_mul_i32 %s, s2, 1093' % s(t0))
    g('s_lshr_b32 %s, %s, 16' % (s(t0), s(t0)))
    g('s_mul_i32 %s, %s, 60' % (s(t1), s(t0)))
    g('s_sub_u32 %s, s2, %s' % (s(t1), s(t1)))
    g('v_and_b32 v1, 7, v0')
    g('v_lshrrev_b32 v2, 3, v0')
    g('v_mul_u32_u24 v3, 7680, v2')
    g('v_lshl_add_u32 v3, v1, 4, v3')
    g('v_lshlrev_b32 v4, 1, v2')
    g('s_mul_i32 %s, %s, %d' % (s(t2), s(t0), 160 * 7680))
    g('s_lshl_b32 %s, %s, 7' % (s(t3), s(t1)))
    g('s_add_u32 %s, %s, %s' % (s(t2), s(t2), s(t3)))
    g('s_mul_i32 %s, %s, 320' % (s(t3), s(t0)))
    W, C, ACC, T = 8, 28, 36, 44
    for j in range(5):
        g('buffer_load_ushort %s, v4, %s, %s offen offset:%d' % (v(C + j), s(SRD_B, 4), s(t3), 64 * j))
    for j in range(5):
        g('buffer_load_dwordx4 %s, v3, %s, %s offen' % (v(W + 4 * j, 4), s(SRD_A, 4), s(t2)))
        if j < 4: g('s_add_u32 %s, %s, %d' % (s(t2), s(t2), 32 * 7680))
    for j in range(5):
        c = C + j
        g('v_lshlrev_b32 %s, 16, %s' % (v(c), v(c)))
        g('v_mul_f32 %s, %s, %s' % (v(T + j), f2u(-LOG2E), v(c)))
    for j in range(5): g('v_exp_f32 %s, %s' % (v(T + j), v(T + j)))
    for j in range(5): g('v_add_f32 %s, 1.0, %s' % (v(T + j), v(T + j)))
    for j in range(5): g('v_rcp_f32 %s, %s' % (v(T + j), v(T + j)))
    for j in range(5): g('v_mul_f32 %s, %s, %s' % (v(C + j), v(C + j), v(T + j)))
    for j in range(5): bf16_round(g, C + j, C + j)
    for j in range(5):
        for d in range(4):
            w = W + 4 * j + d
            g('v_lshlrev_b32 %s, 16, %s' % (v(T), v(w)))
            g('v_and_b32 %s, 0xffff0000, %s' % (v(T + 1), v(w)))
            if j == 0:
                g('v_mul_f32 %s, %s, %s' % (v(ACC + 2 * d), v(T), v(C)))
                g('v_mul_f32 %s, %s, %s' % (v(ACC + 2 * d + 1), v(T + 1), v(C)))
            else:
                g('v_fmac_f32 %s, %s, %s' % (v(ACC + 2 * d), v(T), v(C + j)))
                g('v_fmac_f32 %s, %s, %s' % (v(ACC + 2 * d + 1), v(T + 1), v(C + j)))
    g('v_mul_u32_u24 v5, 272, v2')
    g('v_lshl_add_u32 v5, v1, 5, v5')
    g('ds_write_b128 v5, %s' % v(ACC, 4))
    g('ds_write_b128 v5, %s offset:16' % v(ACC + 4, 4))
    g('v_and_b32 v6, 3, v0')
    g('v_mul_u32_u24 v6, 272, v6')
    g('v_and_b32 v7, 0xfc, v0')
    g('v_add_u32 v6, v6, v7')
    g('s_waitcnt lgkmcnt(0)')
    g('s_barrier')
    for i in range(8): g('ds_read_b32 %s, v6 offset:%d' % (v(W + i), 1088 * i))
    for i in (0, 2, 4, 6): g('v_add_f32 %s, %s, %s' % (v(W + i), v(W + i), v(W + i + 1)))
    for i in (0, 4): g('v_add_f32 %s, %s, %s' % (v(W + i), v(W + i), v(W + i + 2)))
    g('v_add_f32 %s, %s, %s' % (v(W), v(W), v(W + 4)))
    g('v_add_f32_dpp %s, %s, %s quad_perm:[1,0,3,2] row_mask:0xf bank_mask:0xf' % (v(W + 1), v(W), v(W)))
    g('v_add_f32_dpp %s, %s, %s quad_perm:[2,3,0,1] row_mask:0xf bank_mask:0xf' % (v(W + 2), v(W + 1), v(W + 1)))
    g('s_mul_i32 %s, %s, %d' % (s(t2), s(t0), 3840 * 4))
    g('s_lshl_b32 %s, %s, 8' % (s(t3), s(t1)))
    g('s_add_u32 %s, %s, %s' % (s(t2), s(t2), s(t3)))
    g('s_add_u32 %s, %s, %d' % (s(t2), s(t2), WS_MODP))
    g('buffer_store_dword %s, v7, %s, %s offen' % (v(W + 2), s(SRD_WS, 4), s(t2)))
    g('s_branch L0_fin')

    l = Block('ln1')
    l.label('L0_ln')
    l('s_sub_u32 %s, s2, 240' % s(t0))
    l('v_lshrrev_b32 v1, 4, v0')
    l('v_and_b32 v2, 15, v0')
    l('v_mul_u32_u24 v3, 1280, v1')
    l('v_lshl_add_u32 v3, v2, 4, v3')
    l('s_mul_i32 %s, %s, 20480' % (s(t1), s(t0)))
    XR, XF = 8, 28
    for m in range(5):
        l('buffer_load_dwordx4 %s, v3, %s, %s offen offset:%d' % (v(XR + 4 * m, 4), s(SRD_C, 4), s(t1), 256 * m))
    l('v_lshrrev_b32 v4, 1, v2')
    l('v_lshlrev_b32 v4, 10, v4')
    l('v_and_b32 v5, 1, v2')
    l('v_lshl_add_u32 v4, v5, 9, v4')
    l('v_lshl_add_u32 v4, v1, 4, v4')
    l('s_lshr_b32 %s, %s, 1' % (s(t2), s(t0)))
    l('s_mul_i32 %s, %s, 40960' % (s(t2), s(t2)))
    l('s_and_b32 %s, %s, 1' % (s(t3), s(t0)))
    l('s_lshl_b32 %s, %s, 8' % (s(t3), s(t3)))
    l('s_add_u32 %s, %s, %s' % (s(t2), s(t2), s(t3)))
    l('s_add_u32 %s, %s, %d' % (s(t2), s(t2), WS_XH))
    for i in range(20):
        l('v_lshlrev_b32 %s, 16, %s' % (v(XF + 2 * i), v(XR + i)))
        l('v_and_b32 %s, 0xffff0000, %s' % (v(XF + 2 * i + 1), v(XR + i)))
    S0, S1 = 6, 7

    def rowsum16(blk, r):
        for n in (8, 4, 2, 1):
            blk('v_add_f32_dpp %s, %s, %s row_ror:%d row_mask:0xf bank_mask:0xf' % (v(r), v(r), v(r), n))
    l('v_add_f32 %s, %s, %s' % (v(S0), v(XF), v(XF + 1)))
    l('v_add_f32 %s, %s, %s' % (v(S1), v(XF + 2), v(XF + 3)))
    for i in range(4, 40, 2):
        l('v_add_f32 %s, %s, %s' % (v(S0), v(S0), v(XF + i)))
        l('v_add_f32 %s, %s, %s' % (v(S1), v(S1), v(XF + i + 1)))
    l('v_add_f32 %s, %s, %s' % (v(S0), v(S0), v(S1)))
    rowsum16(l, S0)
    l('v_mul_f32 %s, %s, %s' % (v(S0), f2u(1.0 / 640), v(S0)))
    for i in range(40): l('v_sub_f32 %s, %s, %s' % (v(XF + i), v(XF + i), v(S0)))
    l('v_mul_f32 %s, %s, %s' % (v(S0), v(XF), v(XF)))
    l('v_mul_f32 %s, %s, %s' % (v(S1), v(XF + 1), v(XF + 1)))
    for i in range(2, 40, 2):
        l('v_fmac_f32 %s, %s, %s' % (v(S0), v(XF + i), v(XF + i)))
        l('v_fmac_f32 %s, %s, %s' % (v(S1), v(XF + i + 1), v(XF + i + 1)))
    l('v_add_f32 %s, %s, %s' % (v(S0), v(S0), v(S1)))
    rowsum16(l, S0)
    l('v_mov_b32 %s, %s' % (v(S1), f2u(1e-5)))
    l('v_fmac_f32 %s, %s, %s' % (v(S1), f2u(1.0 / 640), v(S0)))
    l('v_rsq_f32 %s, %s' % (v(S1), v(S1)))
    for i in range(40): l('v_mul_f32 %s, %s, %s' % (v(XF + i), v(XF + i), v(S1)))
    for i in range(20): l('v_cvt_pk_f16_f32 %s, %s, %s' % (v(XR + i), v(XF + 2 * i), v(XF + 2 * i + 1)))
    for m in range(5):
        l('buffer_store_dwordx4 %s, v4, %s, %s offen' % (v(XR + 4 * m, 4), s(SRD_WS, 4), s(t2)))
        if m < 4: l('s_add_u32 %s, %s, 8192' % (s(t2), s(t2)))
    e = Block('exit')
    e.label('L0_fin')
    stamp_end(e, 0, 'L0_end0')
    e.label('L0_end')
    e('s_endpgm')
    fix_paths([[p, g, e], [p, l, e]])
    M.kernel(name, [p, g, l, e], 72, NSGPR, 72)
    M.add_launch(name, 368, 256, 8704)


def entry(b, endlab, nwg=256):
    stamp_begin(b)
    b('s_cmp_ge_u32 s2, %d' % nwg)
    b('s_cbranch_scc1 %s' % endlab)
    load_srd(b, SRD_WS, 'ws')
    b('s_and_b32 %s, s2, 7' % s(sX))
    b('s_lshr_b32 %s, s2, 3' % s(sR))
    wave_id(b, 1)


def modtab_issue(b, vecs, R, vq):
    nq = 160 * len(vecs)
    rounds = (nq + 255) // 256
    b('v_lshlrev_b32 %s, 4, v0' % v(vq))
    for rd in range(rounds):
        for pt in range(4):
            off = WS_MODP + pt * 15360 + vecs[0] * 2560 + rd * 4096
            b('s_mov_b32 %s, %d' % (s(sT + pt), off))
            b('buffer_load_dwordx4 %s, %s, %s, %s offen' % (v(R + 16 * rd + 4 * pt, 4), v(vq), s(SRD_WS, 4), s(sT + pt)))
    return rounds


def modtab_finish(b, vecs, R, vq, lds_base, plus1, scale, vt):
    nq = 160 * len(vecs)
    rounds = (nq + 255) // 256
    for rd in range(rounds):
        r = R + 16 * rd
        for e in range(4):
            b('v_add_f32 %s, %s, %s' % (v(r + e), v(r + e), v(r + 4 + e)))
            b('v_add_f32 %s, %s, %s' % (v(r + 8 + e), v(r + 8 + e), v(r + 12 + e)))
        for e in range(4):
            b('v_add_f32 %s, %s, %s' % (v(r + e), v(r + e), v(r + 8 + e)))
        for e in range(4): bf16_round(b, r + e, r + e)
        b('v_mov_b32 %s, 0' % v(vt))
        for pv in plus1:
            lo = (pv - vecs[0]) * 160 - rd * 256
            hi = lo + 160
            if hi <= 0 or lo >= 256: continue
            b('v_subrev_u32 %s, %d, v0' % (v(vt + 1), lo) if lo >= 0 else 'v_add_u32 %s, %d, v0' % (v(vt + 1), -lo))
            b('v_cmp_gt_u32 vcc, 160, %s' % v(vt + 1))
            b('v_cndmask_b32 %s, %s, 1.0, vcc' % (v(vt), v(vt)))
        for e in range(4): b('v_add_f32 %s, %s, %s' % (v(r + e), v(r + e), v(vt)))
        for e in range(4): bf16_round(b, r + e, r + e)
        if scale is not None:
            for e in range(4): b('v_mul_f32 %s, %s, %s' % (v(r + e), f2u(scale), v(r + e)))
        b('ds_write_b128 %s, %s offset:%d' % (v(vq), v(r, 4), lds_base + rd * 4096))


def lane_fields(b, L, T):
    b('v_and_b32 %s, 63, v0' % v(L))


def calc_dma_off(b, dst, L, stride, T):
    b('v_lshrrev_b32 %s, 4, %s' % (v(T), v(L)))
    b('v_lshlrev_b32 %s, 2, %s' % (v(T + 1), v(T)))
    b('v_xor_b32 %s, %s, %s' % (v(T + 1), v(T + 1), v(L)))
    b('v_and_b32 %s, 15, %s' % (v(T + 1), v(T + 1)))
    b('s_lshl_b32 %s, %s, 4' % (s(sT), s(sW)))
    b('v_add_u32 %s, %s, %s' % (v(T), s(sT), v(T)))
    b('s_mov_b32 %s, %d' % (s(sT), stride))
    b('v_mul_lo_u32 %s, %s, %s' % (v(T), v(T), s(sT)))
    for m in range(4):
        b('v_xor_b32 %s, %d, %s' % (v(dst + m), m, v(T + 1)))
        b('v_lshl_add_u32 %s, %s, 4, %s' % (v(dst + m), v(dst + m), v(T)))
        d = 4 * m * stride - 1024 * m
        if d: b('v_add_u32 %s, %d, %s' % (v(dst + m), d, v(dst + m)))


def calc_tr_addr(b, dst, L, T):
    h, g16, r, sw = T, T + 1, T + 2, T + 3
    b('v_lshrrev_b32 %s, 5, %s' % (v(h), v(L)))
    b('v_bfe_u32 %s, %s, 4, 1' % (v(g16), v(L)))
    b('v_bfe_u32 %s, %s, 2, 2' % (v(r), v(L)))
    b('v_and_b32 %s, 1, %s' % (v(sw), v(L)))
    b('v_lshl_add_u32 %s, %s, 1, %s' % (v(g16), v(g16), v(sw)))
    b('v_lshlrev_b32 %s, 1, %s' % (v(sw), v(h)))
    b('v_xor_b32 %s, %s, %s' % (v(g16), v(g16), v(sw)))
    b('v_lshl_add_u32 %s, %s, 2, %s' % (v(g16), v(r), v(g16)))
    b('v_lshl_add_u32 %s, %s, 3, %s' % (v(h), v(h), v(r)))
    b('v_lshlrev_b32 %s, 8, %s' % (v(h), v(h)))
    b('v_bfe_u32 %s, %s, 1, 1' % (v(sw), v(L)))
    b('v_lshl_add_u32 %s, %s, 3, %s' % (v(h), v(sw), v(h)))
    for dt in range(4):
        for sec in range(2):
            d = dst + 2 * dt + sec
            b('v_xor_b32 %s, %d, %s' % (v(d), (dt << 2) | sec, v(g16)))
            b('v_lshl_add_u32 %s, %s, 4, %s' % (v(d), v(d), v(h)))
            if sec: b('v_add_u32 %s, 1024, %s' % (v(d), v(d)))


def calc_k_addr(b, dst, L, T):
    key, sg, h = T, T + 1, T + 2
    b('v_and_b32 %s, 19, %s' % (v(key), v(L)))
    b('v_bfe_u32 %s, %s, 2, 1' % (v(sg), v(L)))
    b('v_lshl_add_u32 %s, %s, 3, %s' % (v(key), v(sg), v(key)))
    b('v_bfe_u32 %s, %s, 3, 1' % (v(sg), v(L)))
    b('v_lshl_add_u32 %s, %s, 2, %s' % (v(key), v(sg), v(key)))
    b('v_and_b32 %s, 3, %s' % (v(sg), v(key)))
    b('v_bfe_u32 %s, %s, 2, 2' % (v(h), v(key)))
    b('v_lshl_add_u32 %s, %s, 2, %s' % (v(sg), v(sg), v(h)))
    b('v_lshrrev_b32 %s, 5, %s' % (v(h), v(L)))
    b('v_xor_b32 %s, %s, %s' % (v(sg), v(sg), v(h)))
    b('v_lshlrev_b32 %s, 8, %s' % (v(key), v(key)))
    for st in range(8):
        b('v_xor_b32 %s, %d, %s' % (v(dst + st), 2 * st, v(sg)))
        b('v_lshl_add_u32 %s, %s, 4, %s' % (v(dst + st), v(dst + st), v(key)))


def I(text, tag=None): return Ins(text, tag)


MF = 'v_mfma_f32_32x32x16_bf16'


A_LDS_MOD = 131072
A_LDS_FLAG = A_LDS_MOD + 8192
A_LDS = A_LDS_FLAG + 64
XRING = 16


def gen_phaseA(M):
    name = 'attn_kernel'
    V = Alloc(1, 256)
    L = V()
    T = V(8, 4)
    TR = V(16)
    VDW = V(4)
    VDK = V(4)
    XOFF = V()
    MADDR = V()
    mark = V.p
    H = V(16, 4)
    MA = V(32, 4)
    X = V(8 * XRING, 4)
    V.p = mark
    KA = V(16)
    LS = V(4)
    Q = V(64, 4)
    S = [V(16, 4), V(16, 4)]
    P = [V(8, 4), V(8, 4)]
    NEG = [V(16, 4), V(16, 4)]
    OT = V(16, 4)
    ACC = 0
    WA = 128
    KF = [128, 160]
    VF = [192, 224]
    sM0, sKV, sWQ, sXB, sMODE = 52, 53, 54, 55, 56

    p = Block('A.entry')
    entry(p, 'LA_end')
    load_srd(p, SRD_A, 'wq')
    load_srd(p, SRD_B, 'k')
    load_srd(p, SRD_C, 'v')
    lane_fields(p, L, T)
    p('s_mov_b32 %s, 0' % s(sMODE))
    p('s_lshl_b32 %s, %s, 12' % (s(sM0), s(sW)))
    p('s_lshl_b32 %s, %s, 8' % (s(sWQ), s(sR)))
    p('s_lshl_b32 %s, %s, 19' % (s(sKV), s(sR)))
    p('s_add_u32 %s, %s, %d' % (s(sKV), s(sKV), 1536 * 256))
    p('s_lshl_b32 %s, %s, 2' % (s(sXB), s(sX)))
    p('s_add_u32 %s, %s, %s' % (s(sXB), s(sXB), s(sW)))
    p('s_mul_i32 %s, %s, %d' % (s(sXB), s(sXB), 2 * 40960))
    p('s_add_u32 %s, %s, %d' % (s(sXB), s(sXB), WS_XH))
    p('v_lshlrev_b32 %s, 4, %s' % (v(XOFF), v(L)))
    MR = H
    assert MA == H + 16
    modtab_issue(p, [0, 1], MR, MADDR)
    calc_dma_off(p, VDW, L, 8192, T)
    calc_dma_off(p, VDK, L, 256, T)

    def dma_chunk(n):
        sl = n % 8
        out = []
        if n < 10:
            srd, vd = SRD_A, VDW
            out.append(I('s_add_u32 %s, %s, %d' % (s(sT + 4), s(sWQ), n * 64 * 8192)))
        else:
            j, isv = (n - 10) // 2, (n - 10) % 2
            srd, vd = (SRD_C if isv else SRD_B), VDK
            out.append(I('s_add_u32 %s, %s, %d' % (s(sT + 4), s(sKV), j * 16384)))
        out.insert(0, I('s_add_u32 m0, %s, %d' % (s(sM0), sl * 16384)))
        for m in range(4):
            out.append(I('buffer_load_dwordx4 %s, %s, %s offen offset:%d lds' % (v(vd + m), s(srd, 4), s(sT + 4), 1024 * m), ('dma', n, [sl])))
        return out

    def xload(u):
        out = []
        for qt in range(2):
            r = X + 8 * (u % XRING) + 4 * qt
            off = qt * 40960 + u * 1024
            out.append(I('s_add_u32 %s, %s, %d' % (s(sT + 5 + qt), s(sXB), off - off % 4096)))
            out.append(I('buffer_load_dwordx4 %s, %s, %s, %s offen offset:%d' % (v(r, 4), v(XOFF), s(SRD_WS, 4), s(sT + 5 + qt), off % 4096)))
        return out

    def trread(dst, n, step, dt):
        sl = n % 8
        base = TR + (8 if sl >= 4 else 0)
        off = (sl % 4) * 16384 + step * 4096
        return [I('ds_read_b64_tr_b16 %s, %s offset:%d' % (a(dst + 2 * sec, 2), v(base + 2 * dt + sec), off), ('rd', n)) for sec in range(2)]

    for u in range(2): p.extend(xload(u))
    p.extend(dma_chunk(0))
    for u in range(2, 8): p.extend(xload(u))
    p.extend(dma_chunk(1))
    for u in range(8, XRING): p.extend(xload(u))
    for n in range(2, 5): p.extend(dma_chunk(n))
    calc_tr_addr(p, TR, L, T)
    for i in range(8): p('v_add_u32 %s, 0x10000, %s' % (v(TR + 8 + i), v(TR + i)))
    p('v_add_u32 %s, %d, %s' % (v(MADDR), A_LDS_MOD, v(MADDR)))
    modtab_finish(p, [0, 1], MR, MADDR, 0, [1], QSCALE, T)
    p('v_lshrrev_b32 %s, 5, %s' % (v(MADDR), v(L)))
    p('v_lshlrev_b32 %s, 5, %s' % (v(MADDR), v(MADDR)))
    p('v_add_u32 %s, %d, %s' % (v(MADDR), A_LDS_MOD, v(MADDR)))
    for i in range(128): p('v_accvgpr_write_b32 %s, 0' % a(ACC + i))
    probe(p, 1)
    p.need(0)
    p('s_waitcnt lgkmcnt(0)')
    p('s_barrier')
    probe(p, 2)
    p('s_waitcnt lgkmcnt(0)')

    def modread(u):
        r = MA + 16 * (u % 2)
        return [I('ds_read_b128 %s, %s offset:%d' % (v(r, 4), v(MADDR), 2560 + 64 * u)),
                I('ds_read_b128 %s, %s offset:%d' % (v(r + 4, 4), v(MADDR), 2560 + 64 * u + 16)),
                I('ds_read_b128 %s, %s offset:%d' % (v(r + 8, 4), v(MADDR), 64 * u)),
                I('ds_read_b128 %s, %s offset:%d' % (v(r + 12, 4), v(MADDR), 64 * u + 16))]

    def modulate(u):
        ma = MA + 16 * (u % 2)
        out = []
        k = 0
        for qt in range(2):
            for d in range(4):
                x = X + 8 * (u % XRING) + 4 * qt + d
                t = T + 2 * (k % 4)
                k += 1
                out.append(I('v_fma_mix_f32 %s, %s, %s, %s op_sel_hi:[1,0,0]' % (v(t), v(x), v(ma + 2 * d), v(ma + 8 + 2 * d))))
                out.append(I('v_fma_mix_f32 %s, %s, %s, %s op_sel:[1,0,0] op_sel_hi:[1,0,0]' % (v(t + 1), v(x), v(ma + 2 * d + 1), v(ma + 8 + 2 * d + 1))))
                out.append(I('v_cvt_pk_bf16_f32 %s, %s, %s' % (v(H + 8 * (u % 2) + 4 * qt + d), v(t), v(t + 1))))
        return out

    q = Block('A.qproj')
    q.extend(modread(0))
    q.extend(modread(1))
    for dt in range(4): q.extend(trread(WA + 4 * dt, 0, 0, dt))
    q.extend(modulate(0))
    NU = 40
    for u in range(NU):
        c, st = u // 4, u % 4
        pre = []
        fill = [[] for _ in range(8)]
        if st == 3 and c < 9:
            if c in (0, 4): probe(q, 3 if c == 0 else 4)
            q.need(c + 1)
            q('s_waitcnt lgkmcnt(0)')
            q('s_barrier')
        if u + 1 < NU:
            lds = []
            for dt in range(4): lds += trread(WA + 16 * ((u + 1) % 2) + 4 * dt, (u + 1) // 4, (u + 1) % 4, dt)
            mod = modulate(u + 1)
            sp = spread(lds, 8, 0, 8)
            sm = spread(mod, 8, 0, 8)
            for i in range(8): fill[i] += sp[i] + sm[i]
        if u + 2 < NU:
            mr = modread(u + 2)
            for i, ins in enumerate(mr): fill[2 * i + 1].append(ins)
        if u + XRING < NU:
            xl = xload(u + XRING)
            fill[0] += xl[:2]
            fill[4] += xl[2:]
        if st == 3 and c < 9:
            d = dma_chunk(c + 5)
            fill[1] += d[:3]
            fill[3].append(d[3]); fill[5].append(d[4]); fill[7].append(d[5])
        mf = []
        for dt in range(4):
            for qt in range(2):
                acc = a(ACC + 32 * dt + 16 * qt, 16)
                mf.append('%s %s, %s, %s, %s' % (MF, acc, a(WA + 16 * (u % 2) + 4 * dt, 4), v(H + 8 * (u % 2) + 4 * qt, 4), acc))
        q.extend(interleave(mf, fill))
    probe(q, 5)
    calc_k_addr(q, KA, L, T)
    for i in range(8): q('v_add_u32 %s, 0x10000, %s' % (v(KA + 8 + i), v(KA + i)))
    for qt in range(2):
        for dt in range(4):
            for j in range(0, 16, 2):
                t = T + (j % 8)
                q('v_accvgpr_read_b32 %s, %s' % (v(t), a(ACC + 32 * dt + 16 * qt + j)))
                q('v_accvgpr_read_b32 %s, %s' % (v(t + 1), a(ACC + 32 * dt + 16 * qt + j + 1)))
                q('v_cvt_pk_bf16_f32 %s, %s, %s' % (v(Q + 32 * qt + 8 * dt + j // 2), v(t), v(t + 1)))

    def kread(t, st):
        n = 10 + 2 * (t // 2)
        sl = n % 8
        base = KA + (8 if sl >= 4 else 0)
        return I('ds_read_b128 %s, %s offset:%d' % (a(KF[t % 2] + 4 * st, 4), v(base + st), (sl % 4) * 16384 + (t % 2) * 8192), ('rd', n))

    def vreads(t):
        n = 11 + 2 * (t // 2)
        out = []
        for ks in range(2):
            for dt in range(4): out += trread(VF[t % 2] + 16 * ks + 4 * dt, n, 2 * (t % 2) + ks, dt)
        return out

    def qk(t, qt, cinit):
        return ['%s %s, %s, %s, %s' % (MF, v(S[qt], 16), a(KF[t % 2] + 4 * st, 4), v(Q + 32 * qt + 4 * st, 4), cinit if st == 0 else v(S[qt], 16)) for st in range(8)]

    def pv(t, qt):
        out = []
        for ks in range(2):
            for dt in range(4):
                acc = a(ACC + 32 * dt + 16 * qt, 16)
                out.append('%s %s, %s, %s, %s' % (MF, acc, a(VF[t % 2] + 16 * ks + 4 * dt, 4), v(P[qt] + 4 * ks, 4), acc))
        return out

    def softmax(qt):
        sl = [[] for _ in range(16)]
        for j in range(16):
            sl[j].append(I('v_exp_f32 %s, %s' % (v(S[qt] + j), v(S[qt] + j))))
        for j in range(16):
            sl[min(j + 1, 15)].append(I('v_add_f32 %s, %s, %s' % (v(LS + 2 * qt + j % 2), v(LS + 2 * qt + j % 2), v(S[qt] + j))))
        for j in range(0, 16, 2):
            sl[min(j + 2, 15)].append(I('v_cvt_pk_bf16_f32 %s, %s, %s' % (v(P[qt] + j // 2), v(S[qt] + j), v(S[qt] + j + 1))))
        return sl

    st0 = Block('A.att_start')
    st0.label('LA_att')
    for i in range(128): st0('v_accvgpr_write_b32 %s, 0' % a(ACC + i))
    for i in range(4): st0('v_mov_b32 %s, 0' % v(LS + i))
    probe(st0, 6)
    st0.need(10, 11)
    st0('s_waitcnt lgkmcnt(0)')
    st0('s_barrier')
    for st in range(8): st0.extend([kread(0, st)])
    st0.extend(vreads(0))
    for n in (14, 15, 16, 17): st0.extend(dma_chunk(n))
    st0('s_cmp_lg_u32 %s, 0' % s(sMODE))
    st0('s_cbranch_scc1 LA_havemax')
    mx = Block('A.first_tile_max')
    mx.extend(qk(0, 0, '0'))
    mx.extend(qk(0, 1, '0'))

    def tile_max(b, qt, dst, first):
        r = S[qt]
        if first:
            b('v_max3_f32 %s, %s, %s, %s' % (v(dst), v(r), v(r + 1), v(r + 2)))
            b('v_max_f32 %s, %s, %s' % (v(dst), v(dst), v(r + 3)))
        else:
            b('v_max3_f32 %s, %s, %s, %s' % (v(dst), v(dst), v(r), v(r + 1)))
            b('v_max3_f32 %s, %s, %s, %s' % (v(dst), v(dst), v(r + 2), v(r + 3)))
        for j in range(4, 16, 2):
            b('v_max3_f32 %s, %s, %s, %s' % (v(dst), v(dst), v(r + j), v(r + j + 1)))

    def finish_max(b):
        for qt in range(2):
            b('v_mov_b32 %s, %s' % (v(T + 2 + qt), v(T + qt)))
        for qt in range(2):
            b('v_permlane32_swap_b32 %s, %s' % (v(T + qt), v(T + 2 + qt)))
        for qt in range(2):
            b('v_max_f32 %s, %s, %s' % (v(T + qt), v(T + qt), v(T + 2 + qt)))
        for qt in range(2):
            for j in range(16): b('v_sub_f32 %s, 0, %s' % (v(NEG[qt] + j), v(T + qt)))
    tile_max(mx, 0, T, True)
    tile_max(mx, 1, T + 1, True)
    finish_max(mx)

    lp = Block('A.att_loop')
    lp.label('LA_havemax')
    lp.extend(qk(0, 0, v(NEG[0], 16)))
    nxt = 18
    for t in range(16):
        fill = [[] for _ in range(32)]
        if t + 1 < 16:
            if (t + 1) % 2 == 0:
                n = 10 + (t + 1)
                if t in (1, 7, 13): probe(lp, {1: 7, 7: 8, 13: 9}[t])
                lp.need(n, n + 1)
                lp('s_waitcnt lgkmcnt(0)')
                lp('s_barrier')
                dm = []
                for c in (nxt, nxt + 1):
                    if c < 26: dm.append(dma_chunk(c))
                nxt += 2
                for i, d in enumerate(dm):
                    base = 12 + 16 * i
                    fill[base] += d[:3]
                    fill[base + 1].append(d[3]); fill[base + 2].append(d[4]); fill[base + 3].append(d[5])
            rd = [kread(t + 1, st) for st in range(8)]
            vr = vreads(t + 1)
            for i, ins in enumerate(rd): fill[i].insert(0, ins)
            slots = [9, 10, 11, 11] + list(range(16, 28))
            for i, ins in enumerate(vr): fill[slots[i]].insert(0, ins)
        s0, s1 = softmax(0), softmax(1)
        for i in range(16):
            fill[i] += s0[i]
            fill[16 + i] += s1[i]
        mfs = qk(t, 1, v(NEG[1], 16)) + (pv(t - 1, 1) if t > 0 else [None] * 8) + (qk(t + 1, 0, v(NEG[0], 16)) if t < 15 else [None] * 8) + pv(t, 0)
        for m, f in zip(mfs, fill):
            if m: lp(m)
            lp.extend(f)
    lp.extend(pv(15, 1))
    probe(lp, 10)
    for qt in range(2):
        lp('v_add_f32 %s, %s, %s' % (v(T + qt), v(LS + 2 * qt), v(LS + 2 * qt + 1)))
    for qt in range(2): lp('v_mov_b32 %s, %s' % (v(T + 2 + qt), v(T + qt)))
    for qt in range(2): lp('v_permlane32_swap_b32 %s, %s' % (v(T + qt), v(T + 2 + qt)))
    for qt in range(2): lp('v_add_f32 %s, %s, %s' % (v(T + qt), v(T + qt), v(T + 2 + qt)))
    lp('v_max_f32 %s, %s, %s' % (v(T + 2), v(T), v(T + 1)))
    lp('v_add_f32 %s, %s, %s' % (v(T + 3), v(T), v(T + 1)))
    lp('v_mov_b32 %s, %s' % (v(T + 4), f2u(2.0 ** 60)))
    lp('v_cmp_nle_f32 vcc, %s, %s' % (v(T + 3), v(T + 4)))
    lp('s_cmp_lg_u64 vcc, 0')
    lp('s_cselect_b32 %s, 1, 0' % s(sT))
    lp('v_mov_b32 %s, %s' % (v(T + 5), s(sT)))
    lp('s_lshl_b32 %s, %s, 2' % (s(sT + 1), s(sW)))
    lp('s_add_u32 %s, %s, %d' % (s(sT + 1), s(sT + 1), A_LDS_FLAG))
    lp('v_mov_b32 %s, %s' % (v(T + 6), s(sT + 1)))
    lp('ds_write_b32 %s, %s' % (v(T + 6), v(T + 5)))
    lp('v_mov_b32 %s, %d' % (v(T + 6), A_LDS_FLAG))
    lp('s_waitcnt lgkmcnt(0)')
    lp('s_barrier')
    lp('ds_read_b128 %s, %s' % (v(OT, 4), v(T + 6)))
    for qt in range(2): lp('v_rcp_f32 %s, %s' % (v(T + qt), v(T + qt)))
    lp('v_or_b32 %s, %s, %s' % (v(OT), v(OT), v(OT + 1)))
    lp('v_or_b32 %s, %s, %s' % (v(OT + 2), v(OT + 2), v(OT + 3)))
    lp('v_or_b32 %s, %s, %s' % (v(OT), v(OT), v(OT + 2)))
    lp('v_readfirstlane_b32 %s, %s' % (s(sT), v(OT)))
    lp('s_andn2_b32 %s, %s, %s' % (s(sT), s(sT), s(sMODE)))
    lp('s_cbranch_scc1 LA_fallback')

    ep = Block('A.epilogue')
    probe(ep, 11)
    ep('s_lshl_b32 %s, %s, 2' % (s(sT), s(sX)))
    ep('s_add_u32 %s, %s, %s' % (s(sT), s(sT), s(sW)))
    ep('s_lshl_b32 %s, %s, 19' % (s(sT), s(sT)))
    ep('s_lshl_b32 %s, %s, 13' % (s(sT + 1), s(sR)))
    ep('s_add_u32 %s, %s, %s' % (s(sT), s(sT), s(sT + 1)))
    ep('s_add_u32 %s, %s, %d' % (s(sT), s(sT), WS_O))
    k = 0
    for qt in range(2):
        for dt in range(4):
            for hf in range(2):
                o = OT + 4 * (k % 4)
                k += 1
                for j in range(0, 8, 2):
                    t = S[0] + 2 * ((4 * k + j // 2) % 8)
                    src = ACC + 32 * dt + 16 * qt + 8 * hf + j
                    ep('v_accvgpr_read_b32 %s, %s' % (v(t), a(src)))
                    ep('v_accvgpr_read_b32 %s, %s' % (v(t + 1), a(src + 1)))
                    ep('v_mul_f32 %s, %s, %s' % (v(t), v(t), v(T + qt)))
                    ep('v_mul_f32 %s, %s, %s' % (v(t + 1), v(t + 1), v(T + qt)))
                    ep('v_cvt_pk_bf16_f32 %s, %s, %s' % (v(o + j // 2), v(t), v(t + 1)))
                ks = 2 * dt + hf
                if ks % 4 == 0:
                    ep('s_add_u32 %s, %s, %d' % (s(sT + 1), s(sT), qt * 262144 + ks * 1024))
                ep('buffer_store_dwordx4 %s, %s, %s, %s offen offset:%d' % (v(o, 4), v(XOFF), s(SRD_WS, 4), s(sT + 1), (ks % 4) * 1024))
    stamp_end(ep, 1, 'LA_end0', S[0])
    ep.label('LA_end')
    ep('s_endpgm')

    fb = Block('A.fallback_pre')
    fb.label('LA_fallback')
    fb('s_mov_b32 %s, 1' % s(sMODE))
    fb('s_mov_b32 %s, 0' % s(sT + 8))
    fb('v_mov_b32 %s, 0xff800000' % v(T))
    fb('v_mov_b32 %s, 0xff800000' % v(T + 1))
    fl = Block('A.fallback_loop')
    fl.label('LA_fb_loop')
    fl('s_barrier')
    fl('s_add_u32 m0, %s, %d' % (s(sM0), 2 * 16384))
    fl('s_add_u32 %s, %s, %s' % (s(sT + 4), s(sKV), s(sT + 8)))
    for m in range(4):
        fl('buffer_load_dwordx4 %s, %s, %s offen offset:%d lds' % (v(VDK + m), s(SRD_B, 4), s(sT + 4), 1024 * m))
    fl('s_waitcnt vmcnt(0)')
    fl('s_barrier')
    for t in range(2):
        for st in range(8):
            ins = kread(t, st)
            ins.tag = None
            fl.extend([ins])
        fl.extend(qk(t, 0, '0'))
        fl.extend(qk(t, 1, '0'))
        tile_max(fl, 0, T, False)
        tile_max(fl, 1, T + 1, False)
    fl('s_add_u32 %s, %s, 16384' % (s(sT + 8), s(sT + 8)))
    fl('s_cmp_lt_u32 %s, %d' % (s(sT + 8), 8 * 16384))
    fl('s_cbranch_scc1 LA_fb_loop')
    fe = Block('A.fallback_post')
    finish_max(fe)
    fe('s_barrier')
    fe.reset()
    for n in range(10, 14): fe.extend(dma_chunk(n))
    fe('s_branch LA_att')

    fix_paths([[p, q, st0, mx, lp, ep], [p, q, st0, mx, lp, fb, fl, fl, fe, st0, lp, ep]], verbose=OPT.get('verbose'))
    M.kernel(name, [p, q, st0, mx, lp, ep, fb, fl, fe], 512, NSGPR, 256)
    M.add_launch(name, 256, 256, A_LDS)


def gen_phaseBD(M, which):
    isB = which == 'B'
    name = 'oproj_kernel' if isB else 'down_kernel'
    lab = 'L' + which
    wname = 'wo' if isB else 'wd'
    NST = 11 if isB else 5
    NCH = 64 if isB else 27
    KS_TOT = 256 if isB else 108
    ACT = WS_O if isB else WS_HH
    PART = WS_PB if isB else WS_PD
    RING = 16
    NS = 4
    V = Alloc(1, 256)
    L = V(); T = V(8, 4); TR = V(16); VDW = V(4); XOFF = V(); EX = V(); PO = V()
    ACCV = V(128, 4)
    RB = V(64, 4)
    WA, XA = 0, 32
    sM0, sWB, sXB, sMT, sNT, sKS, sCH = 52, 53, 54, 55, 56, 57, 58

    p = Block(which + '.entry')
    entry(p, lab + '_end')
    p('s_cmp_ge_u32 %s, 30' % s(sR))
    p('s_cbranch_scc1 %s_end' % lab)
    load_srd(p, SRD_A, wname)
    lane_fields(p, L, T)
    p('s_mul_i32 %s, %s, 6554' % (s(sKS), s(sR)))
    p('s_lshr_b32 %s, %s, 16' % (s(sKS), s(sKS)))
    p('s_mul_i32 %s, %s, 10' % (s(sT), s(sKS)))
    p('s_sub_u32 %s, %s, %s' % (s(sT), s(sR), s(sT)))
    p('s_and_b32 %s, %s, 1' % (s(sMT), s(sT)))
    p('s_lshr_b32 %s, %s, 1' % (s(sNT), s(sT)))
    p('s_lshl_b32 %s, %s, 12' % (s(sM0), s(sW)))
    p('s_mul_i32 %s, %s, %d' % (s(sWB), s(sKS), 2 * NST * 64 * 1280))
    p('s_lshl_b32 %s, %s, 8' % (s(sT), s(sNT)))
    p('s_add_u32 %s, %s, %s' % (s(sWB), s(sWB), s(sT)))
    p('s_lshr_b32 %s, %s, 1' % (s(sT), s(sW)))
    p('s_lshl_b32 %s, %s, 1' % (s(sCH), s(sKS)))
    p('s_add_u32 %s, %s, %s' % (s(sCH), s(sCH), s(sT)))
    p('s_mul_i32 %s, %s, %d' % (s(sCH), s(sCH), NST))
    p('s_and_b32 %s, %s, 1' % (s(sT), s(sW)))
    p('s_lshl_b32 %s, %s, 2' % (s(sXB), s(sX)))
    p('s_lshl_b32 %s, %s, 1' % (s(sT + 1), s(sMT)))
    p('s_add_u32 %s, %s, %s' % (s(sXB), s(sXB), s(sT + 1)))
    p('s_add_u32 %s, %s, %s' % (s(sXB), s(sXB), s(sT)))
    p('s_mul_i32 %s, %s, %d' % (s(sXB), s(sXB), 2 * KS_TOT * 1024))
    p('s_add_u32 %s, %s, %d' % (s(sXB), s(sXB), ACT))
    p('v_lshlrev_b32 %s, 4, %s' % (v(XOFF), v(L)))
    calc_dma_off(p, VDW, L, 1280, T)

    def dma_stage(c):
        sl = c % NS
        out = []
        for kh in range(2):
            out.append(I('s_add_u32 m0, %s, %d' % (s(sM0), sl * 32768 + kh * 16384)))
            out.append(I('s_add_u32 %s, %s, %d' % (s(sT + 4), s(sWB), (kh * NST + c) * 64 * 1280)))
            for m in range(4):
                out.append(I('buffer_load_dwordx4 %s, %s, %s offen offset:%d lds' % (v(VDW + m), s(SRD_A, 4), s(sT + 4), 1024 * m), ('dma', c, [sl])))
        return out

    def xstage_addr(c):
        return [I('s_add_u32 %s, %s, %d' % (s(sT + 8), s(sCH), c)),
                I('s_min_u32 %s, %s, %d' % (s(sT + 8), s(sT + 8), NCH - 1)),
                I('s_lshl_b32 %s, %s, 12' % (s(sT + 8), s(sT + 8))),
                I('s_add_u32 %s, %s, %s' % (s(sT + 8), s(sT + 8), s(sXB))),
                I('s_add_u32 %s, %s, %d' % (s(sT + 9), s(sT + 8), KS_TOT * 1024))]

    def xload(u):
        out = xstage_addr(u // 4) if u % 4 == 0 else []
        for qt in range(2):
            out.append(I('buffer_load_dwordx4 %s, %s, %s, %s offen offset:%d' % (a(XA + 8 * (u % RING) + 4 * qt, 4), v(XOFF), s(SRD_WS, 4), s(sT + 8 + qt), (u % 4) * 1024)))
        return out

    def trread(dst, c, step, dt):
        sl = c % NS
        base = TR + (8 if sl >= 2 else 0)
        off = (sl % 2) * 32768 + step * 4096
        return [I('ds_read_b64_tr_b16 %s, %s offset:%d' % (a(dst + 2 * sec, 2), v(base + 2 * dt + sec), off), ('rd', c)) for sec in range(2)]
    NU = NST * 4
    p.extend(dma_stage(0))
    for u in range(4): p.extend(xload(u))
    p.extend(dma_stage(1))
    for u in range(4, 8): p.extend(xload(u))
    p.extend(dma_stage(2))
    for u in range(8, 12): p.extend(xload(u))
    calc_tr_addr(p, TR, L, T)
    p('s_lshr_b32 %s, %s, 1' % (s(sT), s(sW)))
    p('s_lshl_b32 %s, %s, 14' % (s(sT), s(sT)))
    for i in range(8): p('v_add_u32 %s, %s, %s' % (v(TR + i), s(sT), v(TR + i)))
    for i in range(8): p('v_add_u32 %s, 0x10000, %s' % (v(TR + 8 + i), v(TR + i)))
    for i in range(128): p('v_mov_b32 %s, 0' % v(ACCV + i))
    probe(p, 1)
    p.need(0)
    p('s_barrier')
    probe(p, 2)
    p('s_waitcnt lgkmcnt(0)')
    LOOK = 12
    q = Block(which + '.loop')
    for dt in range(4): q.extend(trread(WA + 4 * dt, 0, 0, dt))
    for u in range(NU):
        c, st = u // 4, u % 4
        fill = [[] for _ in range(8)]
        if st == 3 and c + 1 < NST:
            if c < 8: probe(q, 3 + c)
            q.need(c + 1)
            q('s_waitcnt lgkmcnt(0)')
            q('s_barrier')
        if u + 1 < NU:
            lds = []
            for dt in range(4): lds += trread(WA + 16 * ((u + 1) % 2) + 4 * dt, (u + 1) // 4, (u + 1) % 4, dt)
            for i in range(8): fill[i].append(lds[i])
        if u + LOOK < NU:
            xl = xload(u + LOOK)
            fill[0] += xl[:-1]
            fill[4].append(xl[-1])
        if c + 3 < NST:
            d = dma_stage(c + 3)
            grp = [d[0:3], [d[3]], [d[4]], [d[5]], d[6:9], [d[9]], [d[10]], [d[11]]]
            fill[2] += grp[2 * st]
            fill[6] += grp[2 * st + 1]
        mf = []
        for dt in range(4):
            for qt in range(2):
                acc = v(ACCV + 32 * dt + 16 * qt, 16)
                mf.append('%s %s, %s, %s, %s' % (MF, acc, a(WA + 16 * (u % 2) + 4 * dt, 4), a(XA + 8 * (u % RING) + 4 * qt, 4), acc))
        q.extend(interleave(mf, fill))
    e = Block(which + '.epilogue')
    probe(e, 11)
    e('s_barrier')
    e('s_lshl_b32 %s, %s, 14' % (s(sT), s(sW)))
    e('v_add_u32 %s, %s, %s' % (v(EX), s(sT), v(XOFF)))
    e('v_and_b32 %s, 31, %s' % (v(T), v(L)))
    e('v_lshrrev_b32 %s, 3, %s' % (v(T + 1), v(T)))
    e('v_mul_u32_u24 %s, 20480, %s' % (v(T + 1), v(T + 1)))
    e('v_and_b32 %s, 7, %s' % (v(T), v(T)))
    e('v_lshl_add_u32 %s, %s, 4, %s' % (v(T + 1), v(T), v(T + 1)))
    e('v_lshrrev_b32 %s, 5, %s' % (v(T), v(L)))
    e('v_lshl_add_u32 %s, %s, 8, %s' % (v(PO), v(T), v(T + 1)))
    e('s_mul_i32 %s, %s, 3' % (s(sT + 1), s(sX)))
    e('s_add_u32 %s, %s, %s' % (s(sT + 1), s(sT + 1), s(sKS)))
    e('s_lshl_b32 %s, %s, 3' % (s(sT + 1), s(sT + 1)))
    e('s_lshl_b32 %s, %s, 2' % (s(sT + 2), s(sMT)))
    e('s_add_u32 %s, %s, %s' % (s(sT + 1), s(sT + 1), s(sT + 2)))
    e('s_and_b32 %s, %s, 1' % (s(sT + 2), s(sW)))
    e('s_lshl_b32 %s, %s, 1' % (s(sT + 2), s(sT + 2)))
    e('s_add_u32 %s, %s, %s' % (s(sT + 1), s(sT + 1), s(sT + 2)))
    e('s_lshr_b32 %s, %s, 1' % (s(sT + 2), s(sW)))
    e('s_add_u32 %s, %s, %s' % (s(sT + 1), s(sT + 1), s(sT + 2)))
    e('s_mul_i32 %s, %s, %d' % (s(sT + 1), s(sT + 1), 4 * 20480))
    e('s_lshl_b32 %s, %s, 12' % (s(sT + 3), s(sNT)))
    e('s_add_u32 %s, %s, %s' % (s(sT + 1), s(sT + 1), s(sT + 3)))
    e('s_add_u32 %s, %s, %d' % (s(sT + 1), s(sT + 1), PART))
    e('s_cmp_eq_u32 %s, 0' % s(sT + 2))
    e('s_cbranch_scc1 %s_kh0' % lab)
    halves = []
    for kh in (1, 0):
        hb = Block(which + '.exch%d' % kh)
        if kh == 0: hb.label('%s_kh0' % lab)
        snd = 1 - kh
        for dt in range(4):
            for j4 in range(4):
                hb('ds_write_b128 %s, %s offset:%d' % (v(EX), v(ACCV + 32 * dt + 16 * snd + 4 * j4, 4), (4 * dt + j4) * 1024))
        hb('v_xor_b32 %s, 0x8000, %s' % (v(EX), v(EX)))
        probe(hb, 12)
        hb('s_waitcnt lgkmcnt(0)')
        hb('s_barrier')
        for i in range(16): hb('ds_read_b128 %s, %s offset:%d' % (v(RB + 4 * i, 4), v(EX), i * 1024))
        for dt in range(4):
            for j4 in range(4):
                r = RB + 4 * (4 * dt + j4)
                for ee in range(4):
                    hb('v_add_f32 %s, %s, %s' % (v(r + ee), v(r + ee), v(ACCV + 32 * dt + 16 * kh + 4 * j4 + ee)))
                hb('buffer_store_dwordx4 %s, %s, %s, %s offen offset:%d' % (v(r, 4), v(PO), s(SRD_WS, 4), s(sT + 1), (8 * dt + 4 * (j4 // 2) + j4 % 2) * 128))
        if kh == 1: hb('s_branch %s_fin' % lab)
        halves.append(hb)
    z = Block(which + '.exit')
    z.label(lab + '_fin')
    stamp_end(z, 2 if isB else 5, lab + '_end0', T)
    z.label(lab + '_end')
    z('s_endpgm')
    fix_paths([[p, q, e, halves[0], z], [p, q, e, halves[1], z]], verbose=OPT.get('verbose'))
    M.kernel(name, [p, q, e, halves[0], halves[1], z], 512, NSGPR, 256)
    M.add_launch(name, 256, 256, 131072)


def gen_phaseRE(M, which):
    isR = which == 'R'
    name = 'ln2_kernel' if isR else 'final_kernel'
    lab = 'L' + which
    PART = WS_PB if isR else WS_PD
    V = Alloc(1, 256)
    T = V(8, 4); TQ = V(); XO = V(); MO = V(); HO = V()
    MR = V(32, 4)
    PR = V(60, 4)
    XR = V(10, 2)
    G = V(20, 4); A2 = V(20, 4); B2 = V(20, 4)
    LDS_RED = 12288
    p = Block(which)
    entry(p, lab + '_end')
    load_srd(p, SRD_A, 'x' if isR else 'out')
    vecs = [2, 3, 4] if isR else [5]
    modtab_issue(p, vecs, MR, TQ)
    p('s_mul_i32 %s, %s, 96' % (s(sT + 4), s(sX)))
    p('s_add_u32 %s, %s, %s' % (s(sT + 4), s(sT + 4), s(sR)))
    p('s_mul_i32 %s, %s, 20480' % (s(sT + 4), s(sT + 4)))
    p('s_add_u32 %s, %s, %d' % (s(sT + 4), s(sT + 4), PART))
    for ks in range(3):
        for m in range(5):
            p('s_add_u32 %s, %s, %d' % (s(sT + 5), s(sT + 4), ks * 32 * 20480 + m * 4096))
            p('buffer_load_dwordx4 %s, %s, %s, %s offen' % (v(PR + 20 * ks + 4 * m, 4), v(TQ), s(SRD_WS, 4), s(sT + 5)))
    p('v_and_b32 %s, 7, v0' % v(T))
    p('v_mul_u32_u24 %s, 1280, %s' % (v(XO), v(T)))
    p('v_and_b32 %s, 0xf8, v0' % v(T + 1))
    p('v_add_u32 %s, %s, %s' % (v(XO), v(XO), v(T + 1)))
    p('s_lshl_b32 %s, %s, 5' % (s(sT + 6), s(sX)))
    p('s_add_u32 %s, %s, %s' % (s(sT + 6), s(sT + 6), s(sR)))
    p('s_mul_i32 %s, %s, 10240' % (s(sT + 7), s(sT + 6)))
    p('s_mul_i32 %s, %s, 10240' % (s(sT + 8), s(sT + 6)))
    p('s_add_u32 %s, %s, %d' % (s(sT + 8), s(sT + 8), WS_X1))
    p('v_lshlrev_b32 %s, 3, v0' % v(HO))
    if isR:
        for m in range(5):
            p('buffer_load_dwordx2 %s, %s, %s, %s offen offset:%d' % (v(XR + 2 * m, 2), v(XO), s(SRD_A, 4), s(sT + 7), 256 * m))
    else:
        for m in range(5):
            p('s_add_u32 %s, %s, %d' % (s(sT + 5), s(sT + 8), m * 2048))
            p('buffer_load_dwordx2 %s, %s, %s, %s offen' % (v(XR + 2 * m, 2), v(HO), s(SRD_WS, 4), s(sT + 5)))
    probe(p, 1)
    modtab_finish(p, vecs, MR, TQ, 0, [4], None, T)
    probe(p, 2)
    p('v_lshlrev_b32 %s, 1, %s' % (v(MO), v(T + 1)))
    p('v_and_b32 %s, 0xf8, v0' % v(MO))
    p('v_lshlrev_b32 %s, 1, %s' % (v(MO), v(MO)))
    p('s_waitcnt lgkmcnt(0)')
    p('s_barrier')
    for m in range(5):
        p('ds_read_b128 %s, %s offset:%d' % (v(G + 4 * m, 4), v(MO), 512 * m))
    if isR:
        for m in range(5):
            p('ds_read_b128 %s, %s offset:%d' % (v(B2 + 4 * m, 4), v(MO), 2560 + 512 * m))
            p('ds_read_b128 %s, %s offset:%d' % (v(A2 + 4 * m, 4), v(MO), 5120 + 512 * m))
    for i in range(20):
        p('v_add_f32 %s, %s, %s' % (v(PR + i), v(PR + i), v(PR + 20 + i)))
    for i in range(20):
        p('v_add_f32 %s, %s, %s' % (v(PR + i), v(PR + i), v(PR + 40 + i)))
    XF = PR + 20
    probe(p, 3)
    for i in range(10):
        p('v_lshlrev_b32 %s, 16, %s' % (v(XF + 2 * i), v(XR + i)))
        p('v_and_b32 %s, 0xffff0000, %s' % (v(XF + 2 * i + 1), v(XR + i)))
    for i in range(20):
        p('v_fmac_f32 %s, %s, %s' % (v(XF + i), v(G + i), v(PR + i)))
    for i in range(10):
        p('v_cvt_pk_bf16_f32 %s, %s, %s' % (v(XR + i), v(XF + 2 * i), v(XF + 2 * i + 1)))
    if not isR:
        for m in range(5):
            p('buffer_store_dwordx2 %s, %s, %s, %s offen offset:%d' % (v(XR + 2 * m, 2), v(XO), s(SRD_A, 4), s(sT + 7), 256 * m))
    else:
        for m in range(5):
            p('s_add_u32 %s, %s, %d' % (s(sT + 5), s(sT + 8), m * 2048))
            p('buffer_store_dwordx2 %s, %s, %s, %s offen' % (v(XR + 2 * m, 2), v(HO), s(SRD_WS, 4), s(sT + 5)))
        for i in range(10):
            p('v_lshlrev_b32 %s, 16, %s' % (v(XF + 2 * i), v(XR + i)))
            p('v_and_b32 %s, 0xffff0000, %s' % (v(XF + 2 * i + 1), v(XR + i)))
        S0, S1, RA = T, T + 1, T + 2
        probe(p, 4)

        def wgsum(r, slot):
            p('v_add_f32_dpp %s, %s, %s row_ror:8 row_mask:0xf bank_mask:0xf' % (v(r), v(r), v(r)))
            p('v_mov_b32 %s, %s' % (v(T + 3), v(r)))
            p('v_permlane16_swap_b32 %s, %s' % (v(r), v(T + 3)))
            p('v_add_f32 %s, %s, %s' % (v(r), v(r), v(T + 3)))
            p('v_mov_b32 %s, %s' % (v(T + 3), v(r)))
            p('v_permlane32_swap_b32 %s, %s' % (v(r), v(T + 3)))
            p('v_add_f32 %s, %s, %s' % (v(r), v(r), v(T + 3)))
            p('v_and_b32 %s, 7, v0' % v(RA))
            p('v_lshlrev_b32 %s, 4, %s' % (v(RA), v(RA)))
            p('s_lshl_b32 %s, %s, 2' % (s(sT), s(sW)))
            p('v_add_u32 %s, %s, %s' % (v(T + 3), s(sT), v(RA)))
            p('ds_write_b32 %s, %s offset:%d' % (v(T + 3), v(r), LDS_RED + slot * 128))
            p('s_waitcnt lgkmcnt(0)')
            p('s_barrier')
            p('ds_read_b128 %s, %s offset:%d' % (v(T + 4, 4), v(RA), LDS_RED + slot * 128))
            p('v_add_f32 %s, %s, %s' % (v(T + 4), v(T + 4), v(T + 5)))
            p('v_add_f32 %s, %s, %s' % (v(T + 6), v(T + 6), v(T + 7)))
            p('v_add_f32 %s, %s, %s' % (v(r), v(T + 4), v(T + 6)))
        p('v_add_f32 %s, %s, %s' % (v(S0), v(XF), v(XF + 1)))
        p('v_add_f32 %s, %s, %s' % (v(S1), v(XF + 2), v(XF + 3)))
        for i in range(4, 20, 2):
            p('v_add_f32 %s, %s, %s' % (v(S0), v(S0), v(XF + i)))
            p('v_add_f32 %s, %s, %s' % (v(S1), v(S1), v(XF + i + 1)))
        p('v_add_f32 %s, %s, %s' % (v(S0), v(S0), v(S1)))
        wgsum(S0, 0)
        p('v_mul_f32 %s, %s, %s' % (v(S0), f2u(1.0 / 640), v(S0)))
        for i in range(20): p('v_sub_f32 %s, %s, %s' % (v(XF + i), v(XF + i), v(S0)))
        p('v_mul_f32 %s, %s, %s' % (v(S0), v(XF), v(XF)))
        p('v_mul_f32 %s, %s, %s' % (v(S1), v(XF + 1), v(XF + 1)))
        for i in range(2, 20, 2):
            p('v_fmac_f32 %s, %s, %s' % (v(S0), v(XF + i), v(XF + i)))
            p('v_fmac_f32 %s, %s, %s' % (v(S1), v(XF + i + 1), v(XF + i + 1)))
        p('v_add_f32 %s, %s, %s' % (v(S0), v(S0), v(S1)))
        wgsum(S0, 1)
        p('v_mov_b32 %s, %s' % (v(S1), f2u(1e-5)))
        p('v_fmac_f32 %s, %s, %s' % (v(S1), f2u(1.0 / 640), v(S0)))
        p('v_rsq_f32 %s, %s' % (v(S1), v(S1)))
        for i in range(20): p('v_mul_f32 %s, %s, %s' % (v(XF + i), v(XF + i), v(S1)))
        for i in range(20): p('v_fma_f32 %s, %s, %s, %s' % (v(XF + i), v(XF + i), v(A2 + i), v(B2 + i)))
        HR = PR
        for i in range(10): p('v_cvt_pk_bf16_f32 %s, %s, %s' % (v(HR + i), v(XF + 2 * i), v(XF + 2 * i + 1)))
        p('v_lshrrev_b32 %s, 5, v0' % v(T))
        p('v_lshlrev_b32 %s, 10, %s' % (v(HO), v(T)))
        p('v_bfe_u32 %s, v0, 4, 1' % v(T))
        p('v_lshl_add_u32 %s, %s, 9, %s' % (v(HO), v(T), v(HO)))
        p('v_bfe_u32 %s, v0, 3, 1' % v(T))
        p('v_lshl_add_u32 %s, %s, 3, %s' % (v(HO), v(T), v(HO)))
        p('v_and_b32 %s, 7, v0' % v(T))
        p('v_lshl_add_u32 %s, %s, 4, %s' % (v(HO), v(T), v(HO)))
        p('s_lshr_b32 %s, %s, 2' % (s(sT), s(sT + 6)))
        p('s_mul_i32 %s, %s, 40960' % (s(sT), s(sT)))
        p('s_and_b32 %s, %s, 3' % (s(sT + 1), s(sR)))
        p('s_lshl_b32 %s, %s, 7' % (s(sT + 1), s(sT + 1)))
        p('s_add_u32 %s, %s, %s' % (s(sT), s(sT), s(sT + 1)))
        p('s_add_u32 %s, %s, %d' % (s(sT), s(sT), WS_H2))
        for m in range(5):
            p('buffer_store_dwordx2 %s, %s, %s, %s offen' % (v(HR + 2 * m, 2), v(HO), s(SRD_WS, 4), s(sT)))
            if m < 4: p('s_add_u32 %s, %s, 8192' % (s(sT), s(sT)))
    stamp_end(p, 3 if isR else 6, lab + '_end0', T)
    p.label(lab + '_end')
    p('s_endpgm')
    fix_paths([[p]], verbose=OPT.get('verbose'))
    M.kernel(name, [p], (V.hi + 7) // 8 * 8, NSGPR, (V.hi + 7) // 8 * 8)
    M.add_launch(name, 256, 256, LDS_RED + 256)


def gen_phaseC(M):
    name = 'glu_kernel'
    RING = 16
    V = Alloc(1, 256)
    L = V(); T = V(8, 4); TR = V(8); VD = V(4); XOFF = V()
    ACCV = V(128, 4)
    OT = V(16, 4)
    WA, XA = 0, 32
    sM0, sWB, sXB = 52, 53, 54
    p = Block('C.entry')
    entry(p, 'LC_end')
    p('s_cmp_ge_u32 %s, 27' % s(sR))
    p('s_cbranch_scc1 LC_end')
    load_srd(p, SRD_A, 'wg')
    load_srd(p, SRD_B, 'wu')
    lane_fields(p, L, T)
    p('s_lshl_b32 %s, %s, 11' % (s(sM0), s(sW)))
    p('s_lshl_b32 %s, %s, 7' % (s(sWB), s(sR)))
    p('s_lshl_b32 %s, %s, 2' % (s(sXB), s(sX)))
    p('s_add_u32 %s, %s, %s' % (s(sXB), s(sXB), s(sW)))
    p('s_mul_i32 %s, %s, %d' % (s(sXB), s(sXB), 2 * 40960))
    p('s_add_u32 %s, %s, %d' % (s(sXB), s(sXB), WS_H2))
    p('v_lshlrev_b32 %s, 4, %s' % (v(XOFF), v(L)))
    p('v_lshrrev_b32 %s, 3, %s' % (v(T), v(L)))
    p('v_bfe_u32 %s, %s, 4, 1' % (v(T + 1), v(L)))
    p('v_lshlrev_b32 %s, 1, %s' % (v(T + 1), v(T + 1)))
    p('v_xor_b32 %s, %s, %s' % (v(T + 1), v(T + 1), v(L)))
    p('v_and_b32 %s, 7, %s' % (v(T + 1), v(T + 1)))
    p('s_lshl_b32 %s, %s, 4' % (s(sT), s(sW)))
    p('v_add_u32 %s, %s, %s' % (v(T), s(sT), v(T)))
    p('v_mul_u32_u24 %s, 3456, %s' % (v(T), v(T)))
    for isu in range(2):
        for m in range(2):
            d = VD + 2 * isu + m
            p('v_xor_b32 %s, %d, %s' % (v(d), 4 * isu, v(T + 1)))
            p('v_lshl_add_u32 %s, %s, 4, %s' % (v(d), v(d), v(T)))
            if m: p('v_add_u32 %s, %d, %s' % (v(d), 8 * 3456 - 1024, v(d)))

    def dma_stage(c):
        sl = c % 8
        out = [I('s_add_u32 %s, %s, %d' % (s(sT + 4), s(sWB), c * 64 * 3456))]
        for isu in range(2):
            out.append(I('s_add_u32 m0, %s, %d' % (s(sM0), sl * 16384 + isu * 8192)))
            for m in range(2):
                out.append(I('buffer_load_dwordx4 %s, %s, %s offen offset:%d lds' % (v(VD + 2 * isu + m), s(SRD_B if isu else SRD_A, 4), s(sT + 4), 1024 * m), ('dma', c, [sl])))
        return out

    def xload(u):
        out = []
        for qt in range(2):
            off = qt * 40960 + u * 1024
            out.append(I('s_add_u32 %s, %s, %d' % (s(sT + 5 + qt), s(sXB), off - off % 4096)))
            out.append(I('buffer_load_dwordx4 %s, %s, %s, %s offen offset:%d' % (a(XA + 8 * (u % RING) + 4 * qt, 4), v(XOFF), s(SRD_WS, 4), s(sT + 5 + qt), off % 4096)))
        return out

    def trread(dst, c, step, dt):
        sl = c % 8
        base = TR + (4 if sl >= 4 else 0)
        off = (sl % 4) * 16384 + step * 2048
        return [I('ds_read_b64_tr_b16 %s, %s offset:%d' % (a(dst + 2 * sec, 2), v(base + dt), off + 512 * sec), ('rd', c)) for sec in range(2)]
    p.extend(dma_stage(0))
    for u in range(4): p.extend(xload(u))
    p.extend(dma_stage(1))
    for u in range(4, 8): p.extend(xload(u))
    p.extend(dma_stage(2))
    for u in range(8, 15): p.extend(xload(u))
    for c in range(3, 6): p.extend(dma_stage(c))
    p('v_bfe_u32 %s, %s, 4, 1' % (v(T), v(L)))
    p('v_bfe_u32 %s, %s, 3, 1' % (v(T + 1), v(L)))
    p('v_lshl_add_u32 %s, %s, 1, %s' % (v(T + 1), v(T), v(T + 1)))
    p('v_and_b32 %s, 1, %s' % (v(T + 2), v(L)))
    p('v_lshl_add_u32 %s, %s, 1, %s' % (v(T + 1), v(T + 1), v(T + 2)))
    p('v_lshlrev_b32 %s, 13, %s' % (v(T), v(T)))
    p('v_lshrrev_b32 %s, 5, %s' % (v(T + 2), v(L)))
    p('v_lshl_add_u32 %s, %s, 10, %s' % (v(T), v(T + 2), v(T)))
    p('v_bfe_u32 %s, %s, 2, 2' % (v(T + 2), v(L)))
    p('v_lshl_add_u32 %s, %s, 7, %s' % (v(T), v(T + 2), v(T)))
    p('v_bfe_u32 %s, %s, 1, 1' % (v(T + 2), v(L)))
    p('v_lshl_add_u32 %s, %s, 3, %s' % (v(T), v(T + 2), v(T)))
    for dt in range(4):
        p('v_xor_b32 %s, %d, %s' % (v(TR + dt), 2 * dt, v(T + 1)))
        p('v_lshl_add_u32 %s, %s, 4, %s' % (v(TR + dt), v(TR + dt), v(T)))
        p('v_add_u32 %s, 0x10000, %s' % (v(TR + 4 + dt), v(TR + dt)))
    for i in range(128): p('v_mov_b32 %s, 0' % v(ACCV + i))
    probe(p, 1)
    p.need(0)
    p('s_barrier')
    probe(p, 2)
    p('s_waitcnt lgkmcnt(0)')
    q = Block('C.loop')
    for dt in range(4): q.extend(trread(WA + 4 * dt, 0, 0, dt))
    NU, LOOK = 40, 15
    for u in range(NU):
        c, st = u // 4, u % 4
        fill = [[] for _ in range(8)]
        if st == 3 and c + 1 < 10:
            if c < 8: probe(q, 3 + c)
            q.need(c + 1)
            q('s_waitcnt lgkmcnt(0)')
            q('s_barrier')
        if u + 1 < NU:
            lds = []
            for dt in range(4): lds += trread(WA + 16 * ((u + 1) % 2) + 4 * dt, (u + 1) // 4, (u + 1) % 4, dt)
            for i in range(8): fill[i].append(lds[i])
        if u + LOOK < NU:
            xl = xload(u + LOOK)
            fill[0] += xl[:2]
            fill[4] += xl[2:]
        if st == 3 and c + 6 < 10:
            d = dma_stage(c + 6)
            fill[1] += d[:3]
            fill[3].append(d[3]); fill[5] += d[4:6]; fill[7].append(d[6])
        mf = []
        for dt in range(4):
            for qt in range(2):
                acc = v(ACCV + 32 * dt + 16 * qt, 16)
                mf.append('%s %s, %s, %s, %s' % (MF, acc, a(WA + 16 * (u % 2) + 4 * dt, 4), a(XA + 8 * (u % RING) + 4 * qt, 4), acc))
        q.extend(interleave(mf, fill))
    probe(q, 11)
    q('s_lshl_b32 %s, %s, 2' % (s(sT), s(sX)))
    q('s_add_u32 %s, %s, %s' % (s(sT), s(sT), s(sW)))
    q('s_mul_i32 %s, %s, %d' % (s(sT), s(sT), 2 * 108 * 1024))
    q('s_lshl_b32 %s, %s, 12' % (s(sT + 1), s(sR)))
    q('s_add_u32 %s, %s, %s' % (s(sT), s(sT), s(sT + 1)))
    q('s_add_u32 %s, %s, %d' % (s(sT), s(sT), WS_HH))
    q('s_add_u32 %s, %s, %d' % (s(sT + 1), s(sT), 108 * 1024))
    k = 0
    for dt in range(4):
        for qt in range(2):
            r = ACCV + 32 * dt + 16 * qt
            o = OT + 4 * (k % 4)
            k += 1
            for j in range(8): q('v_mul_f32 %s, %s, %s' % (v(r + j), v(r + j), v(r + 8 + j)))
            for j in range(0, 8, 2): q('v_cvt_pk_bf16_f32 %s, %s, %s' % (v(o + j // 2), v(r + j), v(r + j + 1)))
            q('buffer_store_dwordx4 %s, %s, %s, %s offen offset:%d' % (v(o, 4), v(XOFF), s(SRD_WS, 4), s(sT + qt), dt * 1024))
    stamp_end(q, 4, 'LC_end0', T)
    q.label('LC_end')
    q('s_endpgm')
    fix_paths([[p, q]], verbose=OPT.get('verbose'))
    M.kernel(name, [p, q], 512, NSGPR, 256)
    M.add_launch(name, 256, 256, 131072)


HEADER = open('adaLN_cond__sliding_block_cached__glu_gated_bilinear__prompt.s.ref').read().split('; Override launch')[0] \
    if __name__ == '__main__' else ''


def main():
    out = sys.argv[1]
    for o in sys.argv[2:]:
        k, _, val = o.partition('=')
        OPT[k] = int(val) if val else True
    M = Module()
    gen_k0(M)
    gen_phaseA(M)
    gen_phaseBD(M, 'B')
    gen_phaseRE(M, 'R')
    gen_phaseC(M)
    gen_phaseBD(M, 'D')
    gen_phaseRE(M, 'E')
    open(out, 'w').write(M.render(HEADER))


if __name__ == '__main__':
    main()
```

```python
import sys, struct
from kasm import *

OPT = dict(stamp=False)

WS_FLAGS = 0
WS_MODP = 0x10000
WS_XH = 0x100000
WS_O = 0x400000
WS_PB = 0x1400000
WS_H2D = 0x2800000
WS_HHD = 0x2C00000
WS_PDD = 0x3C00000
WS_STAMP = 0x8000000
WS_SIZE = 0x10000000

ARG = dict(x=0, k=8, v=16, wq=24, wo=32, wg=48, wu=56, wd=64, c=72, wmod=80, out=88, dbg=96, ws=104)
SIZE = dict(x=2621440, k=16777216, v=16777216, wq=5242880, wo=5242880, wg=2211840, wu=2211840, wd=2211840,
            c=1280, wmod=4915200, out=2621440, ws=WS_SIZE)
LOG2E = 1.4426950408889634
QSCALE = LOG2E * 128 ** -0.5


def f2u(x): return '0x%08x' % struct.unpack('<I', struct.pack('<f', x))[0]


sW, sX, sR, sSLOW, sMODE = 3, 4, 5, 6, 7
SRD = dict(ws=8, wq=12, k=16, v=20, wo=24, wg=28, wu=32, wd=36, x=40, out=44, wmod=12, c=16)
sV = 48
sT = 64
sSTAMP = 80
NSGPR = 88
vPROBE = 250
WSR = s(SRD['ws'], 4)
MF = 'v_mfma_f32_32x32x16_bf16'


def I(text, tag=None): return Ins(text, tag)


def load_srd(b, name):
    r = SRD[name]
    b('s_load_dwordx2 %s, s[0:1], %d' % (s(r, 2), ARG[name]))
    b('s_mov_b32 %s, %d' % (s(r + 2), SIZE[name]))
    b('s_mov_b32 %s, 0x20000' % s(r + 3))


def probe(b, i):
    if OPT.get('probe'):
        b('s_memtime %s' % s(sSTAMP + 4, 2))
        b('s_waitcnt lgkmcnt(0)')
        b('v_writelane_b32 %s, %s, %d' % (v(vPROBE), s(sSTAMP + 4), i))


def stamp_begin(b):
    if OPT['stamp']:
        b('s_memrealtime %s' % s(sSTAMP, 2))
    if OPT.get('probe'):
        b('v_mov_b32 %s, 0' % v(vPROBE))
    probe(b, 0)


def stamp_end(b, kidx, lab, vt):
    if not OPT['stamp']: return
    probe(b, 62)
    b('s_waitcnt vmcnt(0)')
    probe(b, 63)
    b('s_memrealtime %s' % s(sSTAMP + 2, 2))
    if OPT.get('probe'):
        b('s_lshl_b32 %s, s2, 2' % s(sT))
        b('s_add_u32 %s, %s, %s' % (s(sT), s(sT), s(sW)))
        b('s_lshl_b32 %s, %s, 8' % (s(sT), s(sT)))
        b('s_add_u32 %s, %s, %d' % (s(sT), s(sT), WS_STAMP + 0x100000 + kidx * 0x80000))
        b('v_and_b32 %s, 63, v0' % v(vt))
        b('v_lshlrev_b32 %s, 2, %s' % (v(vt), v(vt)))
        b('buffer_store_dword %s, %s, %s, %s offen' % (v(vPROBE), v(vt), WSR, s(sT)))
    b('s_cmp_lg_u32 %s, 0' % s(sW))
    b('s_cbranch_scc1 %s' % lab)
    b('s_waitcnt lgkmcnt(0)')
    for i in range(4): b('v_mov_b32 %s, %s' % (v(vt + i), s(sSTAMP + i)))
    b('s_lshl_b32 %s, s2, 4' % s(sT))
    b('s_add_u32 %s, %s, %d' % (s(sT), s(sT), WS_STAMP + kidx * 16384))
    b('buffer_store_dwordx4 %s, off, %s, %s' % (v(vt, 4), WSR, s(sT)))
    b.label(lab)


def bf16_round(dst, src):
    return ['v_cvt_pk_bf16_f32 %s, %s, %s' % (v(dst), v(src), v(src)), 'v_lshlrev_b32 %s, 16, %s' % (v(dst), v(dst))]


def gen_k0(M):
    name = 'prep_kernel'
    p = Block('entry')
    stamp_begin(p)
    p('s_cmp_ge_u32 s2, 368')
    p('s_cbranch_scc1 L0_end')
    for n in ('ws', 'wmod', 'c', 'x'): load_srd(p, n)
    p('v_lshrrev_b32 v1, 6, v0')
    p('v_readfirstlane_b32 %s, v1' % s(sW))
    p('s_cmp_ge_u32 s2, 240')
    p('s_cbranch_scc1 L0_ln')
    g = Block('gemv')
    t0, t1, t2, t3 = sT, sT + 1, sT + 2, sT + 3
    g('s_mul_i32 %s, s2, 1093' % s(t0))
    g('s_lshr_b32 %s, %s, 16' % (s(t0), s(t0)))
    g('s_mul_i32 %s, %s, 60' % (s(t1), s(t0)))
    g('s_sub_u32 %s, s2, %s' % (s(t1), s(t1)))
    g('v_and_b32 v1, 7, v0')
    g('v_lshrrev_b32 v2, 3, v0')
    g('v_mul_u32_u24 v3, 7680, v2')
    g('v_lshl_add_u32 v3, v1, 4, v3')
    g('v_lshlrev_b32 v4, 1, v2')
    g('s_mul_i32 %s, %s, %d' % (s(t2), s(t0), 160 * 7680))
    g('s_lshl_b32 %s, %s, 7' % (s(t3), s(t1)))
    g('s_add_u32 %s, %s, %s' % (s(t2), s(t2), s(t3)))
    g('s_mul_i32 %s, %s, 320' % (s(t3), s(t0)))
    W, C, ACC, T = 8, 28, 36, 44
    for j in range(5):
        g('buffer_load_ushort %s, v4, %s, %s offen offset:%d' % (v(C + j), s(SRD['c'], 4), s(t3), 64 * j))
    for j in range(5):
        g('buffer_load_dwordx4 %s, v3, %s, %s offen' % (v(W + 4 * j, 4), s(SRD['wmod'], 4), s(t2)))
        if j < 4: g('s_add_u32 %s, %s, %d' % (s(t2), s(t2), 32 * 7680))
    for j in range(5):
        c = C + j
        g('v_lshlrev_b32 %s, 16, %s' % (v(c), v(c)))
        g('v_mul_f32 %s, %s, %s' % (v(T + j), f2u(-LOG2E), v(c)))
    for j in range(5): g('v_exp_f32 %s, %s' % (v(T + j), v(T + j)))
    for j in range(5): g('v_add_f32 %s, 1.0, %s' % (v(T + j), v(T + j)))
    for j in range(5): g('v_rcp_f32 %s, %s' % (v(T + j), v(T + j)))
    for j in range(5): g('v_mul_f32 %s, %s, %s' % (v(C + j), v(C + j), v(T + j)))
    for j in range(5): g.extend(bf16_round(C + j, C + j))
    for j in range(5):
        for d in range(4):
            w = W + 4 * j + d
            g('v_lshlrev_b32 %s, 16, %s' % (v(T), v(w)))
            g('v_and_b32 %s, 0xffff0000, %s' % (v(T + 1), v(w)))
            op = 'v_mul_f32' if j == 0 else 'v_fmac_f32'
            g('%s %s, %s, %s' % (op, v(ACC + 2 * d), v(T), v(C + j)))
            g('%s %s, %s, %s' % (op, v(ACC + 2 * d + 1), v(T + 1), v(C + j)))
    g('v_mul_u32_u24 v5, 272, v2')
    g('v_lshl_add_u32 v5, v1, 5, v5')
    g('ds_write_b128 v5, %s' % v(ACC, 4))
    g('ds_write_b128 v5, %s offset:16' % v(ACC + 4, 4))
    g('v_and_b32 v6, 3, v0')
    g('v_mul_u32_u24 v6, 272, v6')
    g('v_and_b32 v7, 0xfc, v0')
    g('v_add_u32 v6, v6, v7')
    g('s_waitcnt lgkmcnt(0)')
    g('s_barrier')
    for i in range(8): g('ds_read_b32 %s, v6 offset:%d' % (v(W + i), 1088 * i))
    for i in (0, 2, 4, 6): g('v_add_f32 %s, %s, %s' % (v(W + i), v(W + i), v(W + i + 1)))
    for i in (0, 4): g('v_add_f32 %s, %s, %s' % (v(W + i), v(W + i), v(W + i + 2)))
    g('v_add_f32 %s, %s, %s' % (v(W), v(W), v(W + 4)))
    g('v_add_f32_dpp %s, %s, %s quad_perm:[1,0,3,2] row_mask:0xf bank_mask:0xf' % (v(W + 1), v(W), v(W)))
    g('v_add_f32_dpp %s, %s, %s quad_perm:[2,3,0,1] row_mask:0xf bank_mask:0xf' % (v(W + 2), v(W + 1), v(W + 1)))
    g('s_mul_i32 %s, %s, %d' % (s(t2), s(t0), 3840 * 4))
    g('s_lshl_b32 %s, %s, 8' % (s(t3), s(t1)))
    g('s_add_u32 %s, %s, %s' % (s(t2), s(t2), s(t3)))
    g('s_add_u32 %s, %s, %d' % (s(t2), s(t2), WS_MODP))
    g('buffer_store_dword %s, v7, %s, %s offen' % (v(W + 2), WSR, s(t2)))
    g('s_branch L0_fin')

    l = Block('ln1')
    l.label('L0_ln')
    l('s_sub_u32 %s, s2, 240' % s(t0))
    l('v_lshrrev_b32 v1, 4, v0')
    l('v_and_b32 v2, 15, v0')
    l('v_mul_u32_u24 v3, 1280, v1')
    l('v_lshl_add_u32 v3, v2, 4, v3')
    l('s_mul_i32 %s, %s, 20480' % (s(t1), s(t0)))
    XR, XF = 8, 28
    for m in range(5):
        l('buffer_load_dwordx4 %s, v3, %s, %s offen offset:%d' % (v(XR + 4 * m, 4), s(SRD['x'], 4), s(t1), 256 * m))
    l('v_mov_b32 v5, 0')
    l('s_lshl_b32 %s, %s, 8' % (s(t2), s(t0)))
    l('buffer_store_byte v5, v0, %s, %s offen' % (WSR, s(t2)))
    l('v_lshrrev_b32 v4, 1, v2')
    l('v_lshlrev_b32 v4, 10, v4')
    l('v_and_b32 v6, 1, v2')
    l('v_lshl_add_u32 v4, v6, 9, v4')
    l('v_lshl_add_u32 v4, v1, 4, v4')
    l('s_lshr_b32 %s, %s, 1' % (s(t2), s(t0)))
    l('s_mul_i32 %s, %s, 40960' % (s(t2), s(t2)))
    l('s_and_b32 %s, %s, 1' % (s(t3), s(t0)))
    l('s_lshl_b32 %s, %s, 8' % (s(t3), s(t3)))
    l('s_add_u32 %s, %s, %s' % (s(t2), s(t2), s(t3)))
    l('s_add_u32 %s, %s, %d' % (s(t2), s(t2), WS_XH))
    for i in range(20):
        l('v_lshlrev_b32 %s, 16, %s' % (v(XF + 2 * i), v(XR + i)))
        l('v_and_b32 %s, 0xffff0000, %s' % (v(XF + 2 * i + 1), v(XR + i)))
    S0 = 6

    def rowsum16(blk, r):
        for n in (8, 4, 2, 1):
            blk('v_add_f32_dpp %s, %s, %s row_ror:%d row_mask:0xf bank_mask:0xf' % (v(r), v(r), v(r), n))
    l('v_pk_add_f32 %s, %s, %s' % (v(S0, 2), v(XF, 2), v(XF + 2, 2)))
    for i in range(4, 40, 2): l('v_pk_add_f32 %s, %s, %s' % (v(S0, 2), v(S0, 2), v(XF + i, 2)))
    l('v_add_f32 %s, %s, %s' % (v(S0), v(S0), v(S0 + 1)))
    rowsum16(l, S0)
    l('v_mul_f32 %s, %s, %s' % (v(S0), f2u(-1.0 / 640), v(S0)))
    l('v_mov_b32 %s, %s' % (v(S0 + 1), v(S0)))
    for i in range(0, 40, 2): l('v_pk_add_f32 %s, %s, %s' % (v(XF + i, 2), v(XF + i, 2), v(S0, 2)))
    l('v_pk_mul_f32 %s, %s, %s' % (v(S0, 2), v(XF, 2), v(XF, 2)))
    for i in range(2, 40, 2): l('v_pk_fma_f32 %s, %s, %s, %s' % (v(S0, 2), v(XF + i, 2), v(XF + i, 2), v(S0, 2)))
    l('v_add_f32 %s, %s, %s' % (v(S0), v(S0), v(S0 + 1)))
    rowsum16(l, S0)
    l('v_mov_b32 %s, %s' % (v(S0 + 1), f2u(1e-5)))
    l('v_fmac_f32 %s, %s, %s' % (v(S0 + 1), f2u(1.0 / 640), v(S0)))
    l('v_rsq_f32 %s, %s' % (v(S0), v(S0 + 1)))
    l('v_mov_b32 %s, %s' % (v(S0 + 1), v(S0)))
    for i in range(0, 40, 2): l('v_pk_mul_f32 %s, %s, %s' % (v(XF + i, 2), v(XF + i, 2), v(S0, 2)))
    for i in range(20): l('v_cvt_pk_f16_f32 %s, %s, %s' % (v(XR + i), v(XF + 2 * i), v(XF + 2 * i + 1)))
    for m in range(5):
        l('buffer_store_dwordx4 %s, v4, %s, %s offen' % (v(XR + 4 * m, 4), WSR, s(t2)))
        if m < 4: l('s_add_u32 %s, %s, 8192' % (s(t2), s(t2)))
    e = Block('exit')
    e.label('L0_fin')
    stamp_end(e, 0, 'L0_end0', 68)
    e.label('L0_end')
    e('s_endpgm')
    fix_paths([[p, g, e], [p, l, e]])
    nv = 256 if OPT.get('probe') else 72
    M.kernel(name, [p, g, l, e], nv, NSGPR, nv)
    M.add_launch(name, 368, 256, 8704)


LDS_MOD = 131072
LDS_MISC = LDS_MOD + 16384
LDS_TOTAL = LDS_MISC + 512
PH_A, PH_B, PH_R, PH_C, PH_D, PH_ID = 0, 1, 2, 3, 4, 7
SPIN_LIMIT = 200000

L, XOFF, MADDR = 1, 2, 3
T = 4
TR = 12
VD1 = 28
VD2 = 32
DUM = 36
AREA = 40
TRC = 232
X1 = 240


class Slots:
    def __init__(self, n):
        self.n = n
        self.pre = [[] for _ in range(n)]
        self.val = [[] for _ in range(n)]
        self.post = [[] for _ in range(n)]
        self.head = []

    def mem(self, slot, items):
        for it in items:
            if it.kind == 'salu':
                (self.post[slot - 1] if slot > 0 else self.head).append(it)
            else:
                self.pre[slot].append(it)

    def emit(self, b, mfmas):
        b.extend(self.head)
        for i in range(self.n):
            if mfmas[i]: b(mfmas[i])
            b.extend(self.pre[i]); b.extend(self.val[i]); b.extend(self.post[i])


def dma_off(dst, stride):
    o = []
    o.append('v_lshrrev_b32 %s, 4, %s' % (v(T), v(L)))
    o.append('v_lshlrev_b32 %s, 2, %s' % (v(T + 1), v(T)))
    o.append('v_xor_b32 %s, %s, %s' % (v(T + 1), v(T + 1), v(L)))
    o.append('v_and_b32 %s, 15, %s' % (v(T + 1), v(T + 1)))
    o.append('v_lshl_add_u32 %s, %s, 4, %s' % (v(T), s(sW), v(T)))
    o.append('v_mul_u32_u24 %s, %d, %s' % (v(T), stride, v(T)))
    for m in range(4):
        o.append('v_xor_b32 %s, %d, %s' % (v(dst + m), m, v(T + 1)))
        o.append('v_lshl_add_u32 %s, %s, 4, %s' % (v(dst + m), v(dst + m), v(T)))
        d = 4 * m * stride - 1024 * m
        if d: o.append('v_add_u32 %s, %d, %s' % (v(dst + m), d, v(dst + m)))
    return o


def tr_addr(dst):
    h, g16, r, sw = T, T + 1, T + 2, T + 3
    o = ['v_lshrrev_b32 %s, 5, %s' % (v(h), v(L)),
         'v_bfe_u32 %s, %s, 4, 1' % (v(g16), v(L)),
         'v_bfe_u32 %s, %s, 2, 2' % (v(r), v(L)),
         'v_and_b32 %s, 1, %s' % (v(sw), v(L)),
         'v_lshl_add_u32 %s, %s, 1, %s' % (v(g16), v(g16), v(sw)),
         'v_lshlrev_b32 %s, 1, %s' % (v(sw), v(h)),
         'v_xor_b32 %s, %s, %s' % (v(g16), v(g16), v(sw)),
         'v_lshl_add_u32 %s, %s, 2, %s' % (v(g16), v(r), v(g16)),
         'v_lshl_add_u32 %s, %s, 3, %s' % (v(h), v(h), v(r)),
         'v_lshlrev_b32 %s, 8, %s' % (v(h), v(h)),
         'v_bfe_u32 %s, %s, 1, 1' % (v(sw), v(L)),
         'v_lshl_add_u32 %s, %s, 3, %s' % (v(h), v(sw), v(h))]
    for dt in range(4):
        for sec in range(2):
            d = dst + 2 * dt + sec
            o.append('v_xor_b32 %s, %d, %s' % (v(d), (dt << 2) | sec, v(g16)))
            o.append('v_lshl_add_u32 %s, %s, 4, %s' % (v(d), v(d), v(h)))
            if sec: o.append('v_add_u32 %s, 1024, %s' % (v(d), v(d)))
    for i in range(8): o.append('v_add_u32 %s, 0x10000, %s' % (v(dst + 8 + i), v(dst + i)))
    return o


def k_addr(dst):
    key, sg, h = T, T + 1, T + 2
    o = ['v_and_b32 %s, 19, %s' % (v(key), v(L)),
         'v_bfe_u32 %s, %s, 2, 1' % (v(sg), v(L)),
         'v_lshl_add_u32 %s, %s, 3, %s' % (v(key), v(sg), v(key)),
         'v_bfe_u32 %s, %s, 3, 1' % (v(sg), v(L)),
         'v_lshl_add_u32 %s, %s, 2, %s' % (v(key), v(sg), v(key)),
         'v_and_b32 %s, 3, %s' % (v(sg), v(key)),
         'v_bfe_u32 %s, %s, 2, 2' % (v(h), v(key)),
         'v_lshl_add_u32 %s, %s, 2, %s' % (v(sg), v(sg), v(h)),
         'v_lshrrev_b32 %s, 5, %s' % (v(h), v(L)),
         'v_xor_b32 %s, %s, %s' % (v(sg), v(sg), v(h)),
         'v_lshlrev_b32 %s, 8, %s' % (v(key), v(key))]
    for st in range(8):
        o.append('v_xor_b32 %s, %d, %s' % (v(dst + st), 2 * st, v(sg)))
        o.append('v_lshl_add_u32 %s, %s, 4, %s' % (v(dst + st), v(dst + st), v(key)))
    for i in range(8): o.append('v_add_u32 %s, 0x10000, %s' % (v(dst + 8 + i), v(dst + i)))
    return o


def modtab_issue(rd, R, vq, st):
    o = []
    for pt in range(4):
        o.append(I('s_mov_b32 %s, %d' % (s(st + pt), WS_MODP + pt * 15360 + rd * 4096)))
        o.append(I('buffer_load_dwordx4 %s, %s, %s, %s offen' % (v(R + 4 * pt, 4), v(vq), WSR, s(st + pt))))
    return o


def lane_range_select(vt, vtmp, lo, n, val):
    return ['v_subrev_u32 %s, %d, v0' % (v(vtmp), lo) if lo >= 0 else 'v_add_u32 %s, %d, v0' % (v(vtmp), -lo),
            'v_cmp_gt_u32 vcc, %d, %s' % (n, v(vtmp)),
            'v_cndmask_b32 %s, %s, %s, vcc' % (v(vt), v(vt), val)]


def modtab_finish(rd, r, vlds, vt):
    o = []
    for e in range(4):
        o.append('v_add_f32 %s, %s, %s' % (v(r + e), v(r + e), v(r + 4 + e)))
        o.append('v_add_f32 %s, %s, %s' % (v(r + 8 + e), v(r + 8 + e), v(r + 12 + e)))
    o.append('v_mov_b32 %s, 0' % v(vt))
    for pv in (1, 4):
        lo = pv * 160 - rd * 256
        if lo + 160 <= 0 or lo >= 256: continue
        o += lane_range_select(vt, vt + 1, lo, 160, '1.0')
    for e in range(4): o.append('v_add_f32 %s, %s, %s' % (v(r + e), v(r + e), v(r + 8 + e)))
    for e in range(4): o += bf16_round(r + e, r + e)
    for e in range(4): o.append('v_add_f32 %s, %s, %s' % (v(r + e), v(r + e), v(vt)))
    for e in range(4): o += bf16_round(r + e, r + e)
    if rd == 0:
        for e in range(4): o.append('v_mul_f32 %s, %s, %s' % (v(r + e), f2u(QSCALE), v(r + e)))
    elif rd == 1:
        o.append('v_mov_b32 %s, 1.0' % v(vt))
        o.append('v_mov_b32 %s, %s' % (v(vt + 2), f2u(QSCALE)))
        o += lane_range_select(vt, vt + 1, 0, 64, v(vt + 2))
        for e in range(4): o.append('v_mul_f32 %s, %s, %s' % (v(r + e), v(vt), v(r + e)))
    o.append('ds_write_b128 %s, %s offset:%d' % (v(vlds), v(r, 4), rd * 4096))
    return o


class Main:
    def __init__(self):
        self.blocks = []
        self.n = 0

    def blk(self, name):
        b = Block(name)
        self.blocks.append(b)
        return b


def gen_main(M):
    dbg = OPT.get('dbgsep')
    H2B = WS_H2D if dbg else WS_XH
    HHB = WS_HHD if dbg else WS_O
    PDB = WS_PDD if dbg else WS_PB
    NT = ' nt' if OPT.get('nt') else ''
    G = Main()
    sFLAG, sM0, sKV, sWQ, sXB, sMT, sNT, sKS, sWB, sWC, sM0C, sRO = range(sV, sV + 12)
    sXA = sV + 12
    sD = sV + 14

    def signal(ph, tagname):
        pre = G.blk(tagname + '.signal')
        pre('s_lshl_b32 %s, %s, 2' % (s(sT), s(sR)))
        pre('s_add_u32 %s, %s, %s' % (s(sT), s(sT), s(sW)))
        pre('s_lshl_b32 %s, %s, 2' % (s(sT), s(sT)))
        pre('s_add_u32 %s, %s, %s' % (s(sT), s(sT), s(sFLAG)))
        pre('v_mov_b32 %s, 1' % v(DUM + 3))
        pre('s_cmp_eq_u32 %s, 0' % s(sSLOW))
        pre('s_waitcnt vmcnt(0)')
        pre('s_cbranch_scc1 L%s_sf' % tagname)
        slow = G.blk(tagname + '.signal_slow')
        slow('buffer_wbl2 sc1')
        slow('s_waitcnt vmcnt(0)')
        slow('buffer_store_dword %s, off, %s, %s offset:%d sc0 sc1' % (v(DUM + 3), WSR, s(sT), ph * 512))
        slow('s_branch L%s_sd' % tagname)
        fast = G.blk(tagname + '.signal_fast')
        fast.label('L%s_sf' % tagname)
        fast('buffer_store_dword %s, off, %s, %s offset:%d' % (v(DUM + 3), WSR, s(sT), ph * 512))
        post = G.blk(tagname + '.signal_done')
        post.label('L%s_sd' % tagname)
        return pre, slow, fast, post

    def poll(ph, tagname):
        pre = G.blk(tagname + '.poll_pre')
        pre('s_mov_b32 %s, 0' % s(sT))
        lp = G.blk(tagname + '.poll')
        lp.label('L%s_p' % tagname)
        lp('buffer_load_dword %s, %s, %s, %s offen offset:%d sc1' % (v(DUM + 3), v(DUM + 2), WSR, s(sFLAG), ph * 512))
        lp('s_add_u32 %s, %s, 1' % (s(sT), s(sT)))
        lp('s_waitcnt vmcnt(0)')
        lp('v_cmp_eq_u32 vcc, 0, %s' % v(DUM + 3))
        lp('s_cmp_eq_u64 vcc, 0')
        lp('s_cbranch_scc1 L%s_pd' % tagname)
        lp('s_cmp_lt_u32 %s, %d' % (s(sT), SPIN_LIMIT))
        lp('s_cbranch_scc1 L%s_p' % tagname)
        d = G.blk(tagname + '.poll_done')
        d.label('L%s_pd' % tagname)
        d('s_cmp_eq_u32 %s, 0' % s(sSLOW))
        d('s_cbranch_scc1 L%s_pf' % tagname)
        slow = G.blk(tagname + '.poll_slow')
        slow('buffer_inv sc1')
        slow('s_waitcnt vmcnt(0)')
        post = G.blk(tagname + '.poll_post')
        post.label('L%s_pf' % tagname)
        return pre, lp, d, slow, post

    def sig_path(t, slow): return [t[0], t[1] if slow else t[2], t[3]]
    def poll_path(t, slow): return [t[0], t[1], t[1], t[2]] + ([t[3]] if slow else []) + [t[4]]

    def touch(dst, vaddr, soff):
        return I('buffer_load_dword %s, %s, %s, %s offen' % (v(dst), v(vaddr), WSR, s(soff)))

    def dma16(cid, slot, srd, vd, base_s, off):
        out = [I('s_add_u32 m0, %s, %d' % (s(sM0), slot * 16384)),
               I('s_add_u32 %s, %s, %d' % (s(sD), s(base_s), off))]
        for m in range(4):
            out.append(I('buffer_load_dwordx4 %s, %s, %s offen offset:%d%s lds' % (v(vd + m), s(SRD[srd], 4), s(sD), 1024 * m, NT), ('dma', cid, [slot])))
        return out

    def dmaA(n):
        if n < 10: return dma16(('A', n), n % 8, 'wq', VD1, sWQ, n * 64 * 8192)
        j, isv = (n - 10) // 2, (n - 10) % 2
        return dma16(('A', n), n % 8, 'v' if isv else 'k', VD2, sKV, j * 16384)

    def bd_slot(i): return (i + 2) % 8

    def dmaBD(which, i):
        return dma16((which, i), bd_slot(i), 'wo' if which == 'B' else 'wd', VD1, sWB if which == 'B' else sWB + 0, i * 64 * 1280)

    def dmaC(c):
        sl = c % 8
        out = []
        for isu in range(2):
            out.append(I('s_add_u32 m0, %s, %d' % (s(sM0C), sl * 16384 + isu * 8192)))
            if isu == 0: out.append(I('s_add_u32 %s, %s, %d' % (s(sD), s(sWC), c * 64 * 3456)))
            for m in range(2):
                out.append(I('buffer_load_dwordx4 %s, %s, %s offen offset:%d%s lds' % (v(VD2 + 2 * isu + m), s(SRD['wu' if isu else 'wg'], 4), s(sD), 1024 * m, NT), ('dma', ('C', c), [sl])))
        return out

    def groups(d):
        out, cur = [], []
        for it in d:
            cur.append(it)
            if it.kind != 'salu':
                out.append(cur); cur = []
        return out

    def trread(dst, cid, slot, step, dt):
        base = TR + (8 if slot >= 4 else 0)
        off = (slot % 4) * 16384 + step * 4096
        return [I('ds_read_b64_tr_b16 %s, %s offset:%d' % (a(dst + 2 * sec, 2), v(base + 2 * dt + sec), off), ('rd', cid)) for sec in range(2)]

    XRING = 16
    H, MA, X = AREA, AREA + 16, AREA + 48
    KA, LS, Q = AREA, AREA + 16, AREA + 20
    S = [AREA + 84, AREA + 100]
    P = [AREA + 116, AREA + 124]
    NEG = [AREA + 132, AREA + 148]
    MR2 = AREA + 164
    MT2 = AREA + 196
    IDV = AREA + 200
    TCH = AREA + 201
    ACC, WA = 0, 128
    KF, VF = [128, 160], [192, 224]

    p = G.blk('A.entry')
    stamp_begin(p)
    p('s_cmp_ge_u32 s2, 256')
    p('s_cbranch_scc1 L_end')
    for n in ('ws', 'wq', 'k', 'v', 'wo', 'wg', 'wu', 'wd', 'x', 'out'): load_srd(p, n)
    p('s_and_b32 %s, s2, 7' % s(sX))
    p('s_lshr_b32 %s, s2, 3' % s(sR))
    p('v_lshrrev_b32 %s, 6, v0' % v(T))
    p('v_and_b32 %s, 63, v0' % v(L))
    p('v_readfirstlane_b32 %s, %s' % (s(sW), v(T)))
    p('v_lshlrev_b32 %s, 4, v0' % v(MADDR))
    p('v_lshlrev_b32 %s, 4, %s' % (v(XOFF), v(L)))
    p('s_mov_b32 %s, 0' % s(sMODE))
    p('s_lshl_b32 %s, %s, 12' % (s(sFLAG), s(sX)))
    p('s_lshl_b32 %s, %s, 12' % (s(sM0), s(sW)))
    p('s_lshl_b32 %s, %s, 8' % (s(sWQ), s(sR)))
    p('s_lshl_b32 %s, %s, 2' % (s(sXB), s(sX)))
    p('s_add_u32 %s, %s, %s' % (s(sXB), s(sXB), s(sW)))
    p('s_mul_i32 %s, %s, %d' % (s(sXB), s(sXB), 2 * 40960))
    p('s_add_u32 %s, %s, %d' % (s(sXB), s(sXB), WS_XH))
    p.extend(dma_off(VD1, 8192))

    def xloadA(u):
        out = []
        if u % 4 == 0:
            for qt in range(2): out.append(I('s_add_u32 %s, %s, %d' % (s(sXA + qt), s(sXB), qt * 40960 + u * 1024)))
        for qt in range(2):
            out.append(I('buffer_load_dwordx4 %s, %s, %s, %s offen offset:%d' % (v(X + 8 * (u % XRING) + 4 * qt, 4), v(XOFF), WSR, s(sXA + qt), (u % 4) * 1024)))
        return out
    for rd in range(2): p.extend(modtab_issue(rd, H + 16 * rd, MADDR, sT))
    p.extend(dmaA(0))
    for u in range(4): p.extend(xloadA(u))
    p.extend(dmaA(1))
    p('s_getreg_b32 %s, hwreg(HW_REG_XCC_ID, 0, 4)' % s(sT))
    p('s_add_u32 %s, %s, 1' % (s(sT), s(sT)))
    p('v_mov_b32 %s, %s' % (v(DUM), s(sT)))
    p('s_lshl_b32 %s, %s, 2' % (s(sT + 1), s(sR)))
    p('s_add_u32 %s, %s, %s' % (s(sT + 1), s(sT + 1), s(sFLAG)))
    p('buffer_store_dword %s, off, %s, %s offset:%d sc0 sc1' % (v(DUM), WSR, s(sT + 1), PH_ID * 512))
    p('s_lshl_b32 %s, %s, 19' % (s(sKV), s(sR)))
    p('s_add_u32 %s, %s, %d' % (s(sKV), s(sKV), 1536 * 256))
    p('s_mul_i32 %s, %s, 6554' % (s(sKS), s(sR)))
    p('s_lshr_b32 %s, %s, 16' % (s(sKS), s(sKS)))
    p('s_mul_i32 %s, %s, 10' % (s(sT), s(sKS)))
    p('s_sub_u32 %s, %s, %s' % (s(sT), s(sR), s(sT)))
    p('s_and_b32 %s, %s, 1' % (s(sMT), s(sT)))
    p('s_lshr_b32 %s, %s, 1' % (s(sNT), s(sT)))
    p('s_mul_i32 %s, %s, %d' % (s(sWB), s(sKS), 22 * 64 * 1280))
    p('s_lshl_b32 %s, %s, 8' % (s(sT), s(sNT)))
    p('s_add_u32 %s, %s, %s' % (s(sWB), s(sWB), s(sT)))
    p('s_lshl_b32 %s, %s, 7' % (s(sWC), s(sR)))
    p('s_lshl_b32 %s, %s, 11' % (s(sM0C), s(sW)))
    p('s_lshl_b32 %s, %s, 5' % (s(sRO), s(sX)))
    p('s_add_u32 %s, %s, %s' % (s(sRO), s(sRO), s(sR)))
    p.extend(dma_off(VD2, 256))
    p.extend(tr_addr(TR))
    p('v_add_u32 %s, %d, %s' % (v(MADDR), LDS_MOD, v(MADDR)))
    probe(p, 1)
    for rd in range(2): p.extend(modtab_finish(rd, H + 16 * rd, MADDR, T))
    p('v_lshrrev_b32 %s, 5, %s' % (v(MADDR), v(L)))
    p('v_lshlrev_b32 %s, 5, %s' % (v(MADDR), v(MADDR)))
    p('v_add_u32 %s, %d, %s' % (v(MADDR), LDS_MOD, v(MADDR)))
    probe(p, 2)
    p.need(('A', 0))
    p('s_waitcnt lgkmcnt(0)')
    p('s_barrier')
    probe(p, 3)

    def modread(u):
        r = MA + 16 * (u % 2)
        return [I('ds_read_b128 %s, %s offset:%d' % (v(r, 4), v(MADDR), 2560 + 64 * u)),
                I('ds_read_b128 %s, %s offset:%d' % (v(r + 8, 4), v(MADDR), 64 * u)),
                I('ds_read_b128 %s, %s offset:%d' % (v(r + 4, 4), v(MADDR), 2560 + 64 * u + 16)),
                I('ds_read_b128 %s, %s offset:%d' % (v(r + 12, 4), v(MADDR), 64 * u + 16))]

    def modulate(u):
        ma = MA + 16 * (u % 2)
        out = []
        k = 0
        for qt in range(2):
            for d in range(4):
                x = X + 8 * (u % XRING) + 4 * qt + d
                t = T + 2 * (k % 4)
                k += 1
                out.append([I('v_fma_mix_f32 %s, %s, %s, %s op_sel_hi:[1,0,0]' % (v(t), v(x), v(ma + 2 * d), v(ma + 8 + 2 * d))),
                            I('v_fma_mix_f32 %s, %s, %s, %s op_sel:[1,0,0] op_sel_hi:[1,0,0]' % (v(t + 1), v(x), v(ma + 2 * d + 1), v(ma + 8 + 2 * d + 1))),
                            I('v_cvt_pk_bf16_f32 %s, %s, %s' % (v(H + 8 * (u % 2) + 4 * qt + d), v(t), v(t + 1)))])
        return out

    q = G.blk('A.qproj')
    q.extend(modread(0))
    for dt in range(4): q.extend(trread(WA + 4 * dt, ('A', 0), 0, 0, dt))
    q.extend(modread(1))
    for g in modulate(0): q.extend(g)
    NU = 40
    xnext = 4
    dq = []
    dsched = {0: [2, 3], 4: [4, 5], 8: [6], 12: [7]}
    for c in range(3, 9): dsched[4 * c + 3] = [c + 5]
    for u in range(NU):
        c, st = u // 4, u % 4
        sl = Slots(8)
        if st == 3 and c < 9:
            if c in (0, 4): probe(q, 4 if c == 0 else 5)
            q.need(('A', c + 1))
            q('s_waitcnt lgkmcnt(0)')
            q('s_barrier')
        for n in dsched.get(u, []): dq += groups(dmaA(n))
        if u + 2 < NU:
            mr = modread(u + 2)
            sl.mem(0, mr[:2]); sl.mem(1, mr[2:])
        if u + 1 < NU:
            for dt in range(4):
                sl.mem(2 + dt, trread(WA + 16 * ((u + 1) % 2) + 4 * dt, ('A', (u + 1) // 4), ((u + 1) // 4) % 8, (u + 1) % 4, dt))
            for i, g in enumerate(modulate(u + 1)): sl.val[i] += g
        todo = []
        while xnext < NU and xnext <= u + XRING and len(todo) < 2:
            todo.append(groups(xloadA(xnext)))
            xnext += 1
        for xl, s0_ in zip(todo, (0, 6) if len(todo) == 2 else (6,)):
            sl.mem(s0_, xl[0]); sl.mem(s0_ + 1, xl[1])
        for slot in (6, 7):
            if dq: sl.mem(slot, dq.pop(0))
        mf = []
        for dt in range(4):
            for qt in range(2):
                acc = a(ACC + 32 * dt + 16 * qt, 16)
                mf.append('%s %s, %s, %s, %s' % (MF, acc, a(WA + 16 * (u % 2) + 4 * dt, 4), v(H + 8 * (u % 2) + 4 * qt, 4), '0' if u == 0 else acc))
        sl.emit(q, mf)
    assert not dq
    probe(q, 6)
    q.extend(k_addr(KA))
    q.extend(dma_off(VD1, 1280))
    for qt in range(2):
        for dt in range(4):
            for j in range(0, 16, 2):
                t = T + (j % 8)
                q('v_accvgpr_read_b32 %s, %s' % (v(t), a(ACC + 32 * dt + 16 * qt + j)))
                q('v_accvgpr_read_b32 %s, %s' % (v(t + 1), a(ACC + 32 * dt + 16 * qt + j + 1)))
                q('v_cvt_pk_bf16_f32 %s, %s, %s' % (v(Q + 32 * qt + 8 * dt + j // 2), v(t), v(t + 1)))

    def kread(t, st):
        n = 10 + 2 * (t // 2)
        sl = n % 8
        base = KA + (8 if sl >= 4 else 0)
        return I('ds_read_b128 %s, %s offset:%d' % (a(KF[t % 2] + 4 * st, 4), v(base + st), (sl % 4) * 16384 + (t % 2) * 8192), ('rd', ('A', n)))

    def vreads(t):
        n = 11 + 2 * (t // 2)
        out = []
        for ks in range(2):
            for dt in range(4): out += trread(VF[t % 2] + 16 * ks + 4 * dt, ('A', n), n % 8, 2 * (t % 2) + ks, dt)
        return out

    def qk(t, qt, cinit):
        return ['%s %s, %s, %s, %s' % (MF, v(S[qt], 16), a(KF[t % 2] + 4 * st, 4), v(Q + 32 * qt + 4 * st, 4), cinit if st == 0 else v(S[qt], 16)) for st in range(8)]

    def pv(t, qt):
        out = []
        for ks in range(2):
            for dt in range(4):
                acc = a(ACC + 32 * dt + 16 * qt, 16)
                out.append('%s %s, %s, %s, %s' % (MF, acc, a(VF[t % 2] + 16 * ks + 4 * dt, 4), v(P[qt] + 4 * ks, 4), '0' if (t == 0 and ks == 0) else acc))
        return out

    def softmax(qt):
        sl = [[] for _ in range(16)]
        for j in range(16):
            sl[j].append(I('v_exp_f32 %s, %s' % (v(S[qt] + j), v(S[qt] + j))))
        for j in range(16):
            sl[min(j + 1, 15)].append(I('v_add_f32 %s, %s, %s' % (v(LS + 2 * qt + j % 2), v(LS + 2 * qt + j % 2), v(S[qt] + j))))
        for j in range(0, 16, 2):
            sl[min(j + 2, 15)].append(I('v_cvt_pk_bf16_f32 %s, %s, %s' % (v(P[qt] + j // 2), v(S[qt] + j), v(S[qt] + j + 1))))
        return sl

    st0 = G.blk('A.att_start')
    st0.label('LA_att')
    for i in range(4): st0('v_mov_b32 %s, 0' % v(LS + i))
    probe(st0, 7)
    st0.need(('A', 10), ('A', 11))
    st0('s_waitcnt lgkmcnt(0)')
    st0('s_barrier')
    for st in range(8): st0.extend([kread(0, st)])
    st0.extend(vreads(0))
    st0('s_cmp_lg_u32 %s, 0' % s(sMODE))
    st0('s_cbranch_scc1 LA_havemax')
    mx = G.blk('A.first_tile_max')
    mx.extend(qk(0, 0, '0'))
    mx.extend(qk(0, 1, '0'))

    def tile_max(b, qt, dst, first):
        r = S[qt]
        if first:
            b('v_max3_f32 %s, %s, %s, %s' % (v(dst), v(r), v(r + 1), v(r + 2)))
            b('v_max_f32 %s, %s, %s' % (v(dst), v(dst), v(r + 3)))
        else:
            b('v_max3_f32 %s, %s, %s, %s' % (v(dst), v(dst), v(r), v(r + 1)))
            b('v_max3_f32 %s, %s, %s, %s' % (v(dst), v(dst), v(r + 2), v(r + 3)))
        for j in range(4, 16, 2):
            b('v_max3_f32 %s, %s, %s, %s' % (v(dst), v(dst), v(r + j), v(r + j + 1)))

    def finish_max(b):
        for qt in range(2): b('v_mov_b32 %s, %s' % (v(T + 2 + qt), v(T + qt)))
        for qt in range(2): b('v_permlane32_swap_b32 %s, %s' % (v(T + qt), v(T + 2 + qt)))
        for qt in range(2): b('v_max_f32 %s, %s, %s' % (v(T + qt), v(T + qt), v(T + 2 + qt)))
        for qt in range(2):
            for j in range(16): b('v_sub_f32 %s, 0, %s' % (v(NEG[qt] + j), v(T + qt)))
    tile_max(mx, 0, T, True)
    tile_max(mx, 1, T + 1, True)
    finish_max(mx)

    lp = G.blk('A.att_loop')
    lp.label('LA_havemax')
    lp.extend(qk(0, 0, v(NEG[0], 16)))
    stream = [dmaA(n) for n in range(14, 26)] + [dmaBD('B', i) for i in range(6)]
    allow = {0: 4}
    for t in range(1, 15, 2): allow[t] = 2
    dq = []
    side_v = []
    for t in range(16):
        sl = Slots(32)
        if t + 1 < 16 and (t + 1) % 2 == 0:
            n = 10 + (t + 1)
            if t in (1, 7, 13): probe(lp, {1: 8, 7: 9, 13: 10}[t])
            lp.need(('A', n), ('A', n + 1))
            lp('s_waitcnt lgkmcnt(0)')
            lp('s_barrier')
        for _ in range(allow.get(t, 0)): dq += groups(stream.pop(0))
        if t + 1 < 16:
            for i in range(8): sl.mem(i, [kread(t + 1, i)])
            vs = [9, 10, 11, 12] + list(range(16, 28))
            for i, ins in enumerate(vreads(t + 1)): sl.mem(vs[i], [ins])
            sl.post[15].append(I('s_waitcnt lgkmcnt(4)'))
        if t == 2:
            sl.val[0].append(I('v_lshlrev_b32 %s, 4, v0' % v(MT2 + 3)))
            for rd in (2, 3): dq += groups(modtab_issue(rd, MR2 + 16 * (rd - 2), MT2 + 3, sT))
        if t == 5:
            side_v = [I('v_add_u32 %s, %d, %s' % (v(MT2 + 3), LDS_MOD, v(MT2 + 3)))]
            for rd in (2, 3): side_v += [I(x) for x in modtab_finish(rd, MR2 + 16 * (rd - 2), MT2 + 3, MT2)]
        if t == 10:
            sl.val[0].append(I('v_lshlrev_b32 %s, 7, %s' % (v(TCH), v(L))))
            sl.val[1].append(I('v_and_b32 %s, 31, %s' % (v(IDV), v(L))))
            sl.val[2].append(I('v_lshlrev_b32 %s, 2, %s' % (v(DUM + 2), v(IDV))))
            sl.val[3].append(I('v_lshlrev_b32 %s, 7, %s' % (v(IDV), v(IDV))))
            dq.append([I('s_lshl_b32 %s, %s, 2' % (s(sT), s(sX))), I('s_add_u32 %s, %s, %s' % (s(sT), s(sT), s(sW))),
                       I('s_lshl_b32 %s, %s, 19' % (s(sT), s(sT))), I('s_lshl_b32 %s, %s, 13' % (s(sT + 1), s(sR))),
                       I('s_add_u32 %s, %s, %s' % (s(sT), s(sT), s(sT + 1))), I('s_add_u32 %s, %s, %d' % (s(sXA), s(sT), WS_O)),
                       touch(DUM, TCH, sXA)])
            dq.append([I('s_add_u32 %s, %s, 262144' % (s(sXA + 1), s(sXA))), touch(DUM + 1, TCH, sXA + 1)])
            dq.append([touch(TCH + 1, IDV, sFLAG)])
        free = [8, 13, 14, 15, 28, 29, 30, 31] if t + 1 < 16 else list(range(4, 32))
        if t == 0: free = [8, 13, 14, 15, 28, 29, 30, 31, 9, 10, 11, 12, 16, 18, 20, 22]
        for slot in sorted(free):
            if dq: sl.mem(slot, dq.pop(0))
        s0, s1 = softmax(0), softmax(1)
        for i in range(16):
            sl.val[i] += s0[i]
            sl.val[16 + i] += s1[i]
        for i in range(32):
            if side_v:
                it = side_v.pop(0)
                if it.kind == 'ds_write': sl.pre[min(i + 1, 31)].append(it) if i < 31 else sl.post[31].append(it)
                else: sl.val[i].insert(1, it)
        mfs = qk(t, 1, v(NEG[1], 16)) + (pv(t - 1, 1) if t > 0 else [None] * 8) + (qk(t + 1, 0, v(NEG[0], 16)) if t < 15 else [None] * 8) + pv(t, 0)
        sl.emit(lp, mfs)
    assert not dq and not stream and not side_v
    lp.extend(pv(15, 1))
    probe(lp, 11)
    for qt in range(2): lp('v_add_f32 %s, %s, %s' % (v(T + qt), v(LS + 2 * qt), v(LS + 2 * qt + 1)))
    for qt in range(2): lp('v_mov_b32 %s, %s' % (v(T + 2 + qt), v(T + qt)))
    for qt in range(2): lp('v_permlane32_swap_b32 %s, %s' % (v(T + qt), v(T + 2 + qt)))
    for qt in range(2): lp('v_add_f32 %s, %s, %s' % (v(T + qt), v(T + qt), v(T + 2 + qt)))
    lp('v_add_f32 %s, %s, %s' % (v(T + 3), v(T), v(T + 1)))
    lp('v_mov_b32 %s, %s' % (v(T + 4), f2u(2.0 ** 60)))
    lp('v_cmp_nle_f32 vcc, %s, %s' % (v(T + 3), v(T + 4)))
    lp('s_cmp_lg_u64 vcc, 0')
    lp('s_cselect_b32 %s, 1, 0' % s(sT))
    lp('v_mov_b32 %s, %s' % (v(T + 5), s(sT)))
    lp('s_lshl_b32 %s, %s, 2' % (s(sT + 1), s(sW)))
    lp('s_add_u32 %s, %s, %d' % (s(sT + 1), s(sT + 1), LDS_MISC))
    lp('v_mov_b32 %s, %s' % (v(T + 6), s(sT + 1)))
    lp('ds_write_b32 %s, %s' % (v(T + 6), v(T + 5)))
    lp('v_mov_b32 %s, %d' % (v(T + 6), LDS_MISC))
    lp('s_waitcnt lgkmcnt(0)')
    lp('s_barrier')
    OT = MR2
    lp('ds_read_b128 %s, %s' % (v(OT, 4), v(T + 6)))
    lp('v_rcp_f32 %s, %s' % (v(T), v(T)))
    lp('v_rcp_f32 %s, %s' % (v(T + 2), v(T + 1)))
    lp('v_or_b32 %s, %s, %s' % (v(OT), v(OT), v(OT + 1)))
    lp('v_or_b32 %s, %s, %s' % (v(OT + 2), v(OT + 2), v(OT + 3)))
    lp('v_or_b32 %s, %s, %s' % (v(OT), v(OT), v(OT + 2)))
    lp('v_mov_b32 %s, %s' % (v(T + 1), v(T)))
    lp('v_mov_b32 %s, %s' % (v(T + 3), v(T + 2)))
    lp('v_readfirstlane_b32 %s, %s' % (s(sT), v(OT)))
    lp('s_andn2_b32 %s, %s, %s' % (s(sT), s(sT), s(sMODE)))
    lp('s_cbranch_scc1 LA_fallback')

    ep = G.blk('A.epilogue')
    probe(ep, 12)
    k = 0
    for qt in range(2):
        for dt in range(4):
            for hf in range(2):
                o = OT + 4 * (k % 4)
                tb = S[0] + 8 * (k % 4)
                k += 1
                src = ACC + 32 * dt + 16 * qt + 8 * hf
                for j in range(8): ep('v_accvgpr_read_b32 %s, %s' % (v(tb + j), a(src + j)))
                for j in range(0, 8, 2): ep('v_pk_mul_f32 %s, %s, %s' % (v(tb + j, 2), v(tb + j, 2), v(T + 2 * qt, 2)))
                for j in range(0, 8, 2): ep('v_cvt_pk_bf16_f32 %s, %s, %s' % (v(o + j // 2), v(tb + j), v(tb + j + 1)))
                ks = 2 * dt + hf
                if ks % 4 == 0: ep('s_add_u32 %s, %s, %d' % (s(sT + 1), s(sXA + qt), ks * 1024))
                ep('buffer_store_dwordx4 %s, %s, %s, %s offen offset:%d' % (v(o, 4), v(XOFF), WSR, s(sT + 1), (ks % 4) * 1024))
    probe(ep, 13)
    ep('s_mov_b32 %s, 0' % s(sSLOW))
    idp = poll(PH_ID, 'ID')
    idc = G.blk('A.idcheck')
    idc('v_readfirstlane_b32 %s, %s' % (s(sT), v(DUM + 3)))
    idc('v_cmp_ne_u32 vcc, %s, %s' % (s(sT), v(DUM + 3)))
    idc('s_cmp_lg_u64 vcc, 0')
    idc('s_cselect_b32 %s, 1, 0' % s(sSLOW))
    if OPT.get('forceslow'): idc('s_mov_b32 %s, 1' % s(sSLOW))
    sigA = signal(PH_A, 'A')

    def phaseBD(which):
        isB = which == 'B'
        NCHK = 22 if isB else 9
        NVALID = 64 if isB else 27
        ACT = WS_O if isB else HHB
        QSTR = 262144 if (isB or not dbg) else 108 * 1024
        PART = WS_PB if isB else PDB
        ACCV, OUTV, PO = AREA, AREA + 64, AREA + 80
        WA_, XA_, NWA, RING = 0, 64, 4, 40
        base_probe = 14 if isB else 40
        pre = G.blk(which + '.pre')
        probe(pre, base_probe)
        pre.need(*[(which, i) for i in range(2)])
        pre('s_barrier')
        if isB:
            pre('v_lshrrev_b32 %s, 3, %s' % (v(T), v(L)))
            pre('v_bfe_u32 %s, %s, 4, 1' % (v(T + 1), v(L)))
            pre('v_lshlrev_b32 %s, 1, %s' % (v(T + 1), v(T + 1)))
            pre('v_xor_b32 %s, %s, %s' % (v(T + 1), v(T + 1), v(L)))
            pre('v_and_b32 %s, 7, %s' % (v(T + 1), v(T + 1)))
            pre('v_lshl_add_u32 %s, %s, 4, %s' % (v(T), s(sW), v(T)))
            pre('v_mul_u32_u24 %s, 3456, %s' % (v(T), v(T)))
            for isu in range(2):
                for m in range(2):
                    d = VD2 + 2 * isu + m
                    pre('v_xor_b32 %s, %d, %s' % (v(d), 4 * isu, v(T + 1)))
                    pre('v_lshl_add_u32 %s, %s, 4, %s' % (v(d), v(d), v(T)))
                    if m: pre('v_add_u32 %s, %d, %s' % (v(d), 8 * 3456 - 1024, v(d)))
        pre('s_cmp_ge_u32 %s, 30' % s(sR))
        pre('s_cbranch_scc1 L%s_skip' % which)
        pr2 = G.blk(which + '.pre2')
        per = 11 if isB else 9
        pr2('s_mul_i32 %s, %s, %d' % (s(sT), s(sKS), per))
        pr2('v_min_u32 %s, %d, %s' % (v(T), per - 1, v(L)))
        pr2('v_add_u32 %s, %s, %s' % (v(T), s(sT), v(T)))
        pr2('v_min_u32 %s, 31, %s' % (v(T), v(T)))
        pr2('s_lshl_b32 %s, %s, 1' % (s(sT), s(sMT)))
        pr2('s_lshr_b32 %s, %s, 1' % (s(sT + 1), s(sW)))
        pr2('s_add_u32 %s, %s, %s' % (s(sT), s(sT), s(sT + 1)))
        pr2('s_lshl_b32 %s, %s, 2' % (s(sT), s(sT)))
        pr2('v_lshl_add_u32 %s, %s, 4, %s' % (v(DUM + 2), v(T), s(sT)))
        pr2('s_lshl_b32 %s, %s, 1' % (s(sXB), s(sX)))
        pr2('s_add_u32 %s, %s, %s' % (s(sXB), s(sXB), s(sMT)))
        pr2('s_lshl_b32 %s, %s, 2' % (s(sXB), s(sXB)))
        pr2('s_add_u32 %s, %s, %s' % (s(sXB), s(sXB), s(sW)))
        pr2('s_mul_i32 %s, %s, %d' % (s(sT + 2), s(sXB), 4 * 10240))
        pr2('s_mul_i32 %s, %s, %d' % (s(sXB), s(sXB), QSTR))
        pr2('s_add_u32 %s, %s, %d' % (s(sXB), s(sXB), ACT))
        pr2('s_mul_i32 %s, %s, %d' % (s(sKV), s(sKS), NCHK))
        pr2('s_lshl_b32 %s, %s, 1' % (s(sT + 3), s(sX)))
        pr2('s_add_u32 %s, %s, %s' % (s(sT + 3), s(sT + 3), s(sKS)))
        pr2('s_mul_i32 %s, %s, %d' % (s(sT + 3), s(sT + 3), 32 * 10240))
        pr2('s_add_u32 %s, %s, %s' % (s(sT + 2), s(sT + 2), s(sT + 3)))
        pr2('s_lshl_b32 %s, %s, 11' % (s(sT + 3), s(sNT)))
        pr2('s_add_u32 %s, %s, %s' % (s(sT + 2), s(sT + 2), s(sT + 3)))
        pr2('s_add_u32 %s, %s, %d' % (s(sWQ), s(sT + 2), PART))
        pr2('v_bfe_u32 %s, %s, 3, 2' % (v(T), v(L)))
        pr2('v_mul_u32_u24 %s, 10240, %s' % (v(T), v(T)))
        pr2('v_and_b32 %s, 7, %s' % (v(T + 1), v(L)))
        pr2('v_lshl_add_u32 %s, %s, 4, %s' % (v(T), v(T + 1), v(T)))
        pr2('v_lshrrev_b32 %s, 5, %s' % (v(T + 1), v(L)))
        pr2('v_lshl_add_u32 %s, %s, 7, %s' % (v(PO), v(T + 1), v(T)))
        pr2('v_lshrrev_b32 %s, 4, %s' % (v(T), v(L)))
        pr2('v_mul_u32_u24 %s, 10240, %s' % (v(T), v(T)))
        pr2('v_and_b32 %s, 15, %s' % (v(T + 1), v(L)))
        pr2('v_lshl_add_u32 %s, %s, 7, %s' % (v(PO + 1), v(T + 1), v(T)))

        def rdW(u):
            i = u // 4
            out = []
            for dt in range(4): out.append(trread(WA_ + 16 * (u % NWA) + 4 * dt, (which, i), bd_slot(i), u % 4, dt))
            return out
        for u in range(2):
            for g in rdW(u): pr2.extend(g)
        pl = poll(PH_A if isB else PH_C, which)

        def xload(u):
            out = []
            if u % 4 == 0:
                out += [I('s_add_u32 %s, %s, %d' % (s(sXA), s(sKV), u // 4)),
                        I('s_min_u32 %s, %s, %d' % (s(sXA), s(sXA), NVALID - 1)),
                        I('s_lshl_b32 %s, %s, 12' % (s(sXA), s(sXA))),
                        I('s_add_u32 %s, %s, %s' % (s(sXA), s(sXA), s(sXB)))]
            out.append(I('buffer_load_dwordx4 %s, %s, %s, %s offen offset:%d sc1' % (a(XA_ + 4 * (u % RING), 4), v(XOFF), WSR, s(sXA), (u % 4) * 1024)))
            return out
        q = G.blk(which + '.loop')
        probe(q, base_probe + 1)
        NU = NCHK * 4
        LOOK = 28
        for u in range(8): q.extend(xload(u))
        xnext = 8
        if isB:
            stream = [dmaBD('B', i) for i in range(6, NCHK)] + [dmaC(c) for c in range(4)]
        else:
            stream = [dmaBD('D', i) for i in range(6, NCHK)]
        dq = []
        for u in range(NU):
            sl = Slots(4)
            if u == 0:
                for _ in range(2):
                    if stream: dq += groups(stream.pop(0))
            if u % 8 == 6 and u + 2 < NU:
                c = u // 8
                if c < 10: probe(q, base_probe + 2 + c)
                q.need(*[(which, i) for i in (2 * c + 2, 2 * c + 3) if i < NCHK])
                q('s_barrier')
                if c >= 1:
                    for _ in range(2):
                        if stream: dq += groups(stream.pop(0))
            if u == (NU * 5 // 8) // 4 * 4 + 1:
                dq.append([touch(DUM, PO + 1, sWQ)])
            if u + 2 < NU:
                for dt, g in enumerate(rdW(u + 2)): sl.mem(dt, g)
            nx = 0
            while xnext < NU and xnext <= u + LOOK and nx < 2:
                sl.mem(1 + 2 * nx, xload(xnext))
                xnext += 1; nx += 1
            for slot in (0, 2):
                if dq: sl.mem(slot, dq.pop(0))
            mf = []
            for dt in range(4):
                acc = v(ACCV + 16 * dt, 16)
                mf.append('%s %s, %s, %s, %s' % (MF, acc, a(WA_ + 16 * (u % NWA) + 4 * dt, 4), a(XA_ + 4 * (u % RING), 4), '0' if u == 0 else acc))
            sl.emit(q, mf)
        assert not dq and not stream, (len(dq), len(stream))
        probe(q, base_probe + 12)
        for dt in range(4):
            for hf in range(2):
                o = OUTV + 4 * ((2 * dt + hf) % 4)
                r = ACCV + 16 * dt + 8 * hf
                for j in range(0, 8, 2): q('v_cvt_pk_bf16_f32 %s, %s, %s' % (v(o + j // 2), v(r + j), v(r + j + 1)))
                q('buffer_store_dwordx4 %s, %s, %s, %s offen offset:%d' % (v(o, 4), v(PO), WSR, s(sWQ), (4 * dt + 2 * hf) * 128))
        sg = signal(PH_B if isB else PH_D, which)
        sk = G.blk(which + '.skip')
        sk.label('L%s_skip' % which)
        return dict(pre=pre, pr2=pr2, pl=pl, q=q, sg=sg, sk=sk)

    def phaseRE(which):
        isR = which == 'R'
        PART = WS_PB if isR else PDB
        A0, A1, XO0, XO1, MO0, MO1 = range(AREA, AREA + 6)
        PR = AREA + 8
        XR = AREA + 40
        F = AREA + 52
        F2 = AREA + 72
        GV, A2, B2 = AREA + 92, AREA + 112, AREA + 132
        base_probe = 28 if isR else 54
        pre = G.blk(which + '.pre')
        probe(pre, base_probe)
        pre('v_lshlrev_b32 %s, 4, v0' % v(A0))
        pre('v_lshrrev_b32 %s, 4, v0' % v(T))
        pre('v_lshlrev_b32 %s, 7, %s' % (v(A1), v(T)))
        pre('v_and_b32 %s, 7, v0' % v(T + 1))
        pre('v_lshl_add_u32 %s, %s, 4, %s' % (v(A1), v(T + 1), v(A1)))
        pre('v_and_b32 %s, 8, v0' % v(T + 2))
        pre('v_add_u32 %s, %s, %s' % (v(A1), v(A1), v(T + 2)))
        pre('v_mul_u32_u24 %s, 1280, %s' % (v(XO1), v(T + 1)))
        pre('v_and_b32 %s, 0xf8, v0' % v(T + 3))
        pre('v_lshl_add_u32 %s, %s, 1, %s' % (v(XO0), v(T + 3), v(XO1)))
        pre('v_add_u32 %s, %s, %s' % (v(XO1), v(XO1), v(T + 3)))
        pre('v_lshlrev_b32 %s, 2, %s' % (v(MO0), v(T + 3)))
        pre('v_add_u32 %s, %d, %s' % (v(MO0), LDS_MOD, v(MO0)))
        pre('v_lshlrev_b32 %s, 1, %s' % (v(MO1), v(T + 3)))
        pre('v_add_u32 %s, %d, %s' % (v(MO1), LDS_MOD, v(MO1)))
        pre('s_mul_i32 %s, %s, 10240' % (s(sT + 4), s(sRO)))

        def modvec(dst, vec):
            o = vec * 2560
            pre('ds_read_b128 %s, %s offset:%d' % (v(dst, 4), v(MO0), o))
            pre('ds_read_b128 %s, %s offset:%d' % (v(dst + 4, 4), v(MO0), o + 16))
            pre('ds_read_b128 %s, %s offset:%d' % (v(dst + 8, 4), v(MO0), o + 1024))
            pre('ds_read_b128 %s, %s offset:%d' % (v(dst + 12, 4), v(MO0), o + 1040))
            pre('ds_read_b128 %s, %s offset:%d' % (v(dst + 16, 4), v(MO1), o + 2048))
        modvec(GV, 2 if isR else 5)
        if isR:
            modvec(B2, 3); modvec(A2, 4)
        pre('v_min_u32 %s, 14, %s' % (v(T), v(L)))
        pre('s_lshr_b32 %s, %s, 4' % (s(sT), s(sR)))
        pre('s_lshl_b32 %s, %s, 4' % (s(sT), s(sT)))
        pre('s_and_b32 %s, %s, 12' % (s(sT + 1), s(sR)))
        pre('s_add_u32 %s, %s, %s' % (s(sT), s(sT), s(sT + 1)))
        pre('v_lshl_add_u32 %s, %s, 5, %s' % (v(DUM + 2), v(T), s(sT)))
        pre('s_mul_i32 %s, %s, 96' % (s(sT + 5), s(sX)))
        pre('s_add_u32 %s, %s, %s' % (s(sT + 5), s(sT + 5), s(sR)))
        pre('s_mul_i32 %s, %s, 10240' % (s(sT + 5), s(sT + 5)))
        pre('s_add_u32 %s, %s, %d' % (s(sT + 5), s(sT + 5), PART))
        pl = poll(PH_B if isR else PH_D, which)
        b = G.blk(which + '.body')
        probe(b, base_probe + 1)
        for ks in range(3):
            b('s_add_u32 %s, %s, %d' % (s(sT + 6), s(sT + 5), ks * 32 * 10240))
            b('s_add_u32 %s, %s, %d' % (s(sT + 7), s(sT + 5), ks * 32 * 10240 + 4096))
            b('s_add_u32 %s, %s, %d' % (s(sT + 8), s(sT + 5), ks * 32 * 10240 + 8192))
            b('buffer_load_dwordx4 %s, %s, %s, %s offen sc1' % (v(PR + 10 * ks, 4), v(A0), WSR, s(sT + 6)))
            b('buffer_load_dwordx4 %s, %s, %s, %s offen sc1' % (v(PR + 10 * ks + 4, 4), v(A0), WSR, s(sT + 7)))
            b('buffer_load_dwordx2 %s, %s, %s, %s offen sc1' % (v(PR + 10 * ks + 8, 2), v(A1), WSR, s(sT + 8)))

        def unpack(dst, srcr):
            for i in range(10):
                b('v_lshlrev_b32 %s, 16, %s' % (v(dst + 2 * i), v(srcr + i)))
                b('v_and_b32 %s, 0xffff0000, %s' % (v(dst + 2 * i + 1), v(srcr + i)))
        XF = AREA + 152
        unpack(XF, X1)
        unpack(F, PR)
        for ks in (1, 2):
            unpack(F2, PR + 10 * ks)
            for i in range(0, 20, 2): b('v_pk_add_f32 %s, %s, %s' % (v(F + i, 2), v(F + i, 2), v(F2 + i, 2)))
        for i in range(0, 20, 2): b('v_pk_fma_f32 %s, %s, %s, %s' % (v(F + i, 2), v(F + i, 2), v(GV + i, 2), v(XF + i, 2)))
        for i in range(10): b('v_cvt_pk_bf16_f32 %s, %s, %s' % (v(X1 + i), v(F + 2 * i), v(F + 2 * i + 1)))
        probe(b, base_probe + 2)
        if not isR:
            o = s(SRD['out'], 4)
            b('buffer_store_dwordx4 %s, %s, %s, %s offen' % (v(X1, 4), v(XO0), o, s(sT + 4)))
            b('buffer_store_dwordx4 %s, %s, %s, %s offen offset:512' % (v(X1 + 4, 4), v(XO0), o, s(sT + 4)))
            b('buffer_store_dwordx2 %s, %s, %s, %s offen offset:1024' % (v(X1 + 8, 2), v(XO1), o, s(sT + 4)))
            return dict(pre=pre, pl=pl, b=b)
        unpack(F, X1)
        S0 = T

        def wavesum(r):
            b('v_add_f32_dpp %s, %s, %s row_ror:8 row_mask:0xf bank_mask:0xf' % (v(r), v(r), v(r)))
            b('v_mov_b32 %s, %s' % (v(T + 3), v(r)))
            b('v_permlane16_swap_b32 %s, %s' % (v(r), v(T + 3)))
            b('v_add_f32 %s, %s, %s' % (v(r), v(r), v(T + 3)))
            b('v_mov_b32 %s, %s' % (v(T + 3), v(r)))
            b('v_permlane32_swap_b32 %s, %s' % (v(r), v(T + 3)))
            b('v_add_f32 %s, %s, %s' % (v(r), v(r), v(T + 3)))
        b('v_pk_add_f32 %s, %s, %s' % (v(S0, 2), v(F, 2), v(F + 2, 2)))
        for i in range(4, 20, 2): b('v_pk_add_f32 %s, %s, %s' % (v(S0, 2), v(S0, 2), v(F + i, 2)))
        b('v_add_f32 %s, %s, %s' % (v(S0), v(S0), v(S0 + 1)))
        wavesum(S0)
        MW = T + 4
        b('v_mul_f32 %s, %s, %s' % (v(MW), f2u(-1.0 / 160), v(S0)))
        b('v_mov_b32 %s, %s' % (v(MW + 1), v(MW)))
        for i in range(0, 20, 2): b('v_pk_add_f32 %s, %s, %s' % (v(F2 + i, 2), v(F + i, 2), v(MW, 2)))
        b('v_pk_mul_f32 %s, %s, %s' % (v(S0, 2), v(F2, 2), v(F2, 2)))
        for i in range(2, 20, 2): b('v_pk_fma_f32 %s, %s, %s, %s' % (v(S0, 2), v(F2 + i, 2), v(F2 + i, 2), v(S0, 2)))
        b('v_add_f32 %s, %s, %s' % (v(MW + 1), v(S0), v(S0 + 1)))
        wavesum(MW + 1)
        b('v_and_b32 %s, 7, v0' % v(T + 2))
        b('v_lshlrev_b32 %s, 5, %s' % (v(T + 2), v(T + 2)))
        b('v_add_u32 %s, %d, %s' % (v(T + 2), LDS_MISC + 64, v(T + 2)))
        b('v_lshl_add_u32 %s, %s, 3, %s' % (v(T + 3), s(sW), v(T + 2)))
        b('ds_write_b64 %s, %s' % (v(T + 3), v(MW, 2)))
        HO0, HO1 = A0, A1
        b('v_lshrrev_b32 %s, 4, v0' % v(T))
        b('v_lshlrev_b32 %s, 10, %s' % (v(HO0), v(T)))
        b('v_bfe_u32 %s, v0, 3, 1' % v(T))
        b('v_lshl_add_u32 %s, %s, 9, %s' % (v(HO0), v(T), v(HO0)))
        b('v_and_b32 %s, 7, v0' % v(T + 1))
        b('v_lshl_add_u32 %s, %s, 4, %s' % (v(HO0), v(T + 1), v(HO0)))
        b('v_lshrrev_b32 %s, 5, v0' % v(HO1))
        b('v_lshlrev_b32 %s, 10, %s' % (v(HO1), v(HO1)))
        b('v_lshl_add_u32 %s, %s, 3, %s' % (v(HO1), v(T), v(HO1)))
        b('v_bfe_u32 %s, v0, 4, 1' % v(T))
        b('v_lshl_add_u32 %s, %s, 9, %s' % (v(HO1), v(T), v(HO1)))
        b('v_lshl_add_u32 %s, %s, 4, %s' % (v(HO1), v(T + 1), v(HO1)))
        b('s_lshr_b32 %s, %s, 2' % (s(sT), s(sRO)))
        b('s_mul_i32 %s, %s, 40960' % (s(sT), s(sT)))
        b('s_and_b32 %s, %s, 3' % (s(sT + 1), s(sR)))
        b('s_lshl_b32 %s, %s, 7' % (s(sT + 1), s(sT + 1)))
        b('s_add_u32 %s, %s, %s' % (s(sT), s(sT), s(sT + 1)))
        b('s_add_u32 %s, %s, %d' % (s(sT + 6), s(sT), H2B))
        b('s_add_u32 %s, %s, 16384' % (s(sT + 7), s(sT + 6)))
        b('s_add_u32 %s, %s, 32768' % (s(sT + 8), s(sT + 6)))
        b('s_waitcnt lgkmcnt(0)')
        b('s_barrier')
        E8 = PR
        b('ds_read_b128 %s, %s' % (v(E8, 4), v(T + 2)))
        b('ds_read_b128 %s, %s offset:16' % (v(E8 + 4, 4), v(T + 2)))
        b('v_pk_add_f32 %s, %s, %s' % (v(S0, 2), v(E8, 2), v(E8 + 2, 2)))
        b('v_pk_add_f32 %s, %s, %s' % (v(MW, 2), v(E8 + 4, 2), v(E8 + 6, 2)))
        b('v_pk_add_f32 %s, %s, %s' % (v(S0, 2), v(S0, 2), v(MW, 2)))
        b('v_mul_f32 %s, 0.25, %s' % (v(S0), v(S0)) if False else 'v_mul_f32 %s, %s, %s' % (v(S0), f2u(0.25), v(S0)))
        for w in range(4): b('v_sub_f32 %s, %s, %s' % (v(E8 + 2 * w), v(E8 + 2 * w), v(S0)))
        b('v_mul_f32 %s, %s, %s' % (v(MW), v(E8), v(E8)))
        for w in range(1, 4): b('v_fmac_f32 %s, %s, %s' % (v(MW), v(E8 + 2 * w), v(E8 + 2 * w)))
        b('v_fmac_f32 %s, %s, %s' % (v(S0 + 1), f2u(160.0), v(MW)))
        b('v_mov_b32 %s, %s' % (v(MW), f2u(1e-5)))
        b('v_fmac_f32 %s, %s, %s' % (v(MW), f2u(1.0 / 640), v(S0 + 1)))
        b('v_rsq_f32 %s, %s' % (v(MW), v(MW)))
        b('v_mov_b32 %s, %s' % (v(S0 + 1), v(S0)))
        for i in range(0, 20, 2): b('v_pk_add_f32 %s, %s, %s' % (v(F + i, 2), v(F + i, 2), v(S0, 2)))
        b('v_mov_b32 %s, %s' % (v(MW + 1), v(MW)))
        for i in range(0, 20, 2): b('v_pk_mul_f32 %s, %s, %s' % (v(F + i, 2), v(F + i, 2), v(MW, 2)))
        for i in range(0, 20, 2): b('v_pk_fma_f32 %s, %s, %s, %s' % (v(F + i, 2), v(F + i, 2), v(A2 + i, 2), v(B2 + i, 2)))
        HR = F2
        for i in range(10): b('v_cvt_pk_bf16_f32 %s, %s, %s' % (v(HR + i), v(F + 2 * i), v(F + 2 * i + 1)))
        b('buffer_store_dwordx4 %s, %s, %s, %s offen' % (v(HR, 4), v(HO0), WSR, s(sT + 6)))
        b('buffer_store_dwordx4 %s, %s, %s, %s offen' % (v(HR + 4, 4), v(HO0), WSR, s(sT + 7)))
        b('buffer_store_dwordx2 %s, %s, %s, %s offen' % (v(HR + 8, 2), v(HO1), WSR, s(sT + 8)))
        probe(b, base_probe + 3)
        sg = signal(PH_R, 'R')
        return dict(pre=pre, pl=pl, b=b, sg=sg)

    xr = G.blk('A.after')
    U = T + 4
    xr('v_and_b32 %s, 7, v0' % v(U + 1))
    xr('v_mul_u32_u24 %s, 1280, %s' % (v(U + 1), v(U + 1)))
    xr('v_and_b32 %s, 0xf8, v0' % v(U + 3))
    xr('v_lshl_add_u32 %s, %s, 1, %s' % (v(U), v(U + 3), v(U + 1)))
    xr('v_add_u32 %s, %s, %s' % (v(U + 1), v(U + 1), v(U + 3)))
    xr('s_mul_i32 %s, %s, 10240' % (s(sT + 4), s(sRO)))
    xr('buffer_load_dwordx4 %s, %s, %s, %s offen' % (v(X1, 4), v(U), s(SRD['x'], 4), s(sT + 4)))
    xr('buffer_load_dwordx4 %s, %s, %s, %s offen offset:512' % (v(X1 + 4, 4), v(U), s(SRD['x'], 4), s(sT + 4)))
    xr('buffer_load_dwordx2 %s, %s, %s, %s offen offset:1024' % (v(X1 + 8, 2), v(U + 1), s(SRD['x'], 4), s(sT + 4)))
    xr('v_min_u32 %s, 79, v0' % v(U + 2))
    xr('v_lshlrev_b32 %s, 9, %s' % (v(U + 2), v(U + 2)))
    xr('s_lshr_b32 %s, %s, 2' % (s(sT), s(sRO)))
    xr('s_mul_i32 %s, %s, 40960' % (s(sT), s(sT)))
    xr('s_and_b32 %s, %s, 3' % (s(sT + 1), s(sR)))
    xr('s_lshl_b32 %s, %s, 7' % (s(sT + 1), s(sT + 1)))
    xr('s_add_u32 %s, %s, %s' % (s(sT), s(sT), s(sT + 1)))
    xr('s_add_u32 %s, %s, %d' % (s(sT), s(sT), H2B))
    xr.extend([touch(DUM, U + 2, sT)])
    G.blocks.remove(xr)
    G.blocks.insert(G.blocks.index(ep), xr)

    B = phaseBD('B')
    B['sg'][3].need(*[('C', c) for c in range(4)])
    R = phaseRE('R')

    ACCV, OTC = AREA, AREA + 128
    WA_, XA_, RINGC = 0, 32, 24
    cp = G.blk('C.pre')
    probe(cp, 32)
    cp('s_mul_i32 %s, %s, %d' % (s(sWB), s(sKS), 9 * 64 * 1280))
    cp('s_lshl_b32 %s, %s, 8' % (s(sT), s(sNT)))
    cp('s_add_u32 %s, %s, %s' % (s(sWB), s(sWB), s(sT)))
    cp('s_cmp_ge_u32 %s, 27' % s(sR))
    cp('s_cbranch_scc1 LC_skip')
    c2 = G.blk('C.pre2')
    c2('v_bfe_u32 %s, %s, 4, 1' % (v(T), v(L)))
    c2('v_bfe_u32 %s, %s, 3, 1' % (v(T + 1), v(L)))
    c2('v_lshl_add_u32 %s, %s, 1, %s' % (v(T + 1), v(T), v(T + 1)))
    c2('v_and_b32 %s, 1, %s' % (v(T + 2), v(L)))
    c2('v_lshl_add_u32 %s, %s, 1, %s' % (v(T + 1), v(T + 1), v(T + 2)))
    c2('v_lshlrev_b32 %s, 13, %s' % (v(T), v(T)))
    c2('v_lshrrev_b32 %s, 5, %s' % (v(T + 2), v(L)))
    c2('v_lshl_add_u32 %s, %s, 10, %s' % (v(T), v(T + 2), v(T)))
    c2('v_bfe_u32 %s, %s, 2, 2' % (v(T + 2), v(L)))
    c2('v_lshl_add_u32 %s, %s, 7, %s' % (v(T), v(T + 2), v(T)))
    c2('v_bfe_u32 %s, %s, 1, 1' % (v(T + 2), v(L)))
    c2('v_lshl_add_u32 %s, %s, 3, %s' % (v(T), v(T + 2), v(T)))
    for dt in range(4):
        c2('v_xor_b32 %s, %d, %s' % (v(TRC + dt), 2 * dt, v(T + 1)))
        c2('v_lshl_add_u32 %s, %s, 4, %s' % (v(TRC + dt), v(TRC + dt), v(T)))
        c2('v_add_u32 %s, 0x10000, %s' % (v(TRC + 4 + dt), v(TRC + dt)))
    c2('v_and_b32 %s, 31, %s' % (v(T), v(L)))
    c2('s_lshl_b32 %s, %s, 7' % (s(sT), s(sW)))
    c2('v_lshl_add_u32 %s, %s, 2, %s' % (v(DUM + 2), v(T), s(sT)))
    c2('s_lshl_b32 %s, %s, 2' % (s(sXB), s(sX)))
    c2('s_add_u32 %s, %s, %s' % (s(sXB), s(sXB), s(sW)))
    HQ = 108 * 1024 if dbg else 262144
    c2('s_mul_i32 %s, %s, %d' % (s(sKV), s(sXB), 2 * HQ))
    c2('s_lshl_b32 %s, %s, 12' % (s(sT), s(sR)))
    c2('s_add_u32 %s, %s, %s' % (s(sKV), s(sKV), s(sT)))
    c2('s_add_u32 %s, %s, %d' % (s(sKV), s(sKV), HHB))
    c2('s_add_u32 %s, %s, %d' % (s(sWQ), s(sKV), HQ))
    c2('s_mul_i32 %s, %s, %d' % (s(sXB), s(sXB), 2 * 40960))
    c2('s_add_u32 %s, %s, %d' % (s(sXB), s(sXB), H2B))
    c2('v_lshrrev_b32 %s, 5, %s' % (v(T + 1), v(L)))
    c2('v_mul_u32_u24 %s, %d, %s' % (v(T + 1), HQ, v(T + 1)))
    c2('v_lshl_add_u32 %s, %s, 7, %s' % (v(OTC + 16), v(T), v(T + 1)))

    def trreadC(dst, c, step, dt):
        sl = c % 8
        base = TRC + (4 if sl >= 4 else 0)
        off = (sl % 4) * 16384 + step * 2048
        return [I('ds_read_b64_tr_b16 %s, %s offset:%d' % (a(dst + 2 * sec, 2), v(base + dt), off + 512 * sec), ('rd', ('C', c))) for sec in range(2)]
    for dt in range(4): c2.extend(trreadC(WA_ + 4 * dt, 0, 0, dt))
    plC = poll(PH_R, 'C')

    def xloadC(u):
        out = []
        if u % 4 == 0:
            for qt in range(2): out.append(I('s_add_u32 %s, %s, %d' % (s(sXA + qt), s(sXB), qt * 40960 + u * 1024)))
        for qt in range(2):
            out.append(I('buffer_load_dwordx4 %s, %s, %s, %s offen offset:%d sc1' % (a(XA_ + 8 * (u % RINGC) + 4 * qt, 4), v(XOFF), WSR, s(sXA + qt), (u % 4) * 1024)))
        return out
    cq = G.blk('C.loop')
    probe(cq, 33)
    for u in range(4): cq.extend(xloadC(u))
    xnext = 4
    LOOK = 16
    dsched = {4 * c: [dmaC(c + 4)] for c in range(6)}
    for i in range(6): dsched.setdefault(12 + 4 * i, []).append(dmaBD('D', i))
    dq = []
    for u in range(40):
        c, st = u // 4, u % 4
        sl = Slots(8)
        if st == 3 and c + 1 < 10:
            if c in (0, 4, 8): probe(cq, 34 + c // 4)
            cq.need(('C', c + 1))
            cq('s_waitcnt lgkmcnt(0)')
            cq('s_barrier')
        for d in dsched.get(u, []): dq += groups(d)
        if u == 25: dq.append([touch(DUM, OTC + 16, sKV)])
        if u + 1 < 40:
            for dt in range(4): sl.mem(dt, trreadC(WA_ + 16 * ((u + 1) % 2) + 4 * dt, (u + 1) // 4, (u + 1) % 4, dt))
            if st != 2: sl.post[7].append(I('s_waitcnt lgkmcnt(0)'))
        nx = 0
        while xnext < 40 and xnext <= u + LOOK and nx < 2:
            xl = groups(xloadC(xnext))
            sl.mem(4 + 2 * nx, xl[0]); sl.mem(5 + 2 * nx, xl[1])
            xnext += 1; nx += 1
        for slot in (4, 5, 6, 7):
            if dq: sl.mem(slot, dq.pop(0))
        mf = []
        for dt in range(4):
            for qt in range(2):
                acc = v(ACCV + 32 * dt + 16 * qt, 16)
                mf.append('%s %s, %s, %s, %s' % (MF, acc, a(WA_ + 16 * (u % 2) + 4 * dt, 4), a(XA_ + 8 * (u % RINGC) + 4 * qt, 4), '0' if u == 0 else acc))
        sl.emit(cq, mf)
    assert not dq
    probe(cq, 37)
    k = 0
    for dt in range(4):
        for qt in range(2):
            r = ACCV + 32 * dt + 16 * qt
            o = OTC + 4 * (k % 4)
            k += 1
            for j in range(0, 8, 2): cq('v_pk_mul_f32 %s, %s, %s' % (v(r + j, 2), v(r + j, 2), v(r + 8 + j, 2)))
            for j in range(0, 8, 2): cq('v_cvt_pk_bf16_f32 %s, %s, %s' % (v(o + j // 2), v(r + j), v(r + j + 1)))
            cq('buffer_store_dwordx4 %s, %s, %s, %s offen offset:%d' % (v(o, 4), v(XOFF), WSR, s(sWQ if qt else sKV), dt * 1024))
    probe(cq, 38)
    sgC = signal(PH_C, 'C')
    cj = G.blk('C.join')
    cj('s_branch LC_done')
    ck = G.blk('C.skip')
    ck.label('LC_skip')
    for i in range(6): ck.extend(dmaBD('D', i))
    cd = G.blk('C.done')
    cd.label('LC_done')

    D = phaseBD('D')
    E = phaseRE('E')
    z = G.blk('exit')
    stamp_end(z, 1, 'L_end0', T)
    z.label('L_end')
    z('s_endpgm')

    fb = G.blk('A.fallback_pre')
    fb.label('LA_fallback')
    fb('s_mov_b32 %s, 1' % s(sMODE))
    fb('s_mov_b32 %s, 0' % s(sT + 8))
    fb('v_mov_b32 %s, 0xff800000' % v(T))
    fb('v_mov_b32 %s, 0xff800000' % v(T + 1))
    fb('s_waitcnt vmcnt(0)')
    fl = G.blk('A.fallback_loop')
    fl.label('LA_fb_loop')
    fl('s_barrier')
    fl('s_add_u32 m0, %s, %d' % (s(sM0), 2 * 16384))
    fl('s_add_u32 %s, %s, %s' % (s(sD), s(sKV), s(sT + 8)))
    for m in range(4):
        fl('buffer_load_dwordx4 %s, %s, %s offen offset:%d lds' % (v(VD2 + m), s(SRD['k'], 4), s(sD), 1024 * m))
    fl('s_waitcnt vmcnt(0)')
    fl('s_barrier')
    for t in range(2):
        for st in range(8):
            ins = kread(t, st)
            ins.tag = None
            fl.extend([ins])
        fl.extend(qk(t, 0, '0'))
        fl.extend(qk(t, 1, '0'))
        tile_max(fl, 0, T, False)
        tile_max(fl, 1, T + 1, False)
    fl('s_add_u32 %s, %s, 16384' % (s(sT + 8), s(sT + 8)))
    fl('s_cmp_lt_u32 %s, %d' % (s(sT + 8), 8 * 16384))
    fl('s_cbranch_scc1 LA_fb_loop')
    fe = G.blk('A.fallback_post')
    finish_max(fe)
    fe('s_barrier')
    fe.reset()
    for n in range(10, 14): fe.extend(dmaA(n))
    fe('s_branch LA_att')

    return G, dict(p=p, q=q, st0=st0, mx=mx, lp=lp, xr=xr, ep=ep, idp=idp, idc=idc, sigA=sigA, B=B, R=R, cp=cp, c2=c2, plC=plC, cq=cq,
                   sgC=sgC, cj=cj, ck=ck, cd=cd, D=D, E=E, z=z, fb=fb, fl=fl, fe=fe, sig_path=sig_path, poll_path=poll_path)


def finish_main(M):
    G, d = gen_main(M)
    sp, pp = d['sig_path'], d['poll_path']

    def path(slow, actBD, actC, fallback):
        pa = [d['p'], d['q'], d['st0'], d['mx'], d['lp']]
        if fallback: pa += [d['fb'], d['fl'], d['fl'], d['fe'], d['st0'], d['lp']]
        pa += [d['xr'], d['ep']] + pp(d['idp'], False) + [d['idc']] + sp(d['sigA'], slow)

        def bd(X):
            o = [X['pre']]
            if actBD: o += [X['pr2']] + pp(X['pl'], slow) + [X['q']] + sp(X['sg'], slow)
            return o + [X['sk']]
        pa += bd(d['B'])
        R = d['R']
        pa += [R['pre']] + pp(R['pl'], slow) + [R['b']] + sp(R['sg'], slow)
        pa += [d['cp']]
        if actC: pa += [d['c2']] + pp(d['plC'], slow) + [d['cq']] + sp(d['sgC'], slow) + [d['cj']]
        else: pa += [d['ck']]
        pa += [d['cd']] + bd(d['D'])
        E = d['E']
        pa += [E['pre']] + pp(E['pl'], slow) + [E['b'], d['z']]
        return pa
    paths = [path(False, True, True, False), path(True, True, True, True), path(False, True, False, False), path(False, False, False, False)]
    fix_paths(paths, verbose=OPT.get('verbose'))
    M.kernel('main_kernel', G.blocks, 512, NSGPR, 256)
    M.add_launch('main_kernel', 256, 256, LDS_TOTAL)


def main():
    out = sys.argv[1]
    for o in sys.argv[2:]:
        k, _, val = o.partition('=')
        OPT[k] = int(val) if val else True
    header = open('adaLN_cond__sliding_block_cached__glu_gated_bilinear__prompt.s.ref').read().split('; Override launch')[0]
    M = Module()
    gen_k0(M)
    finish_main(M)
    open(out, 'w').write(M.render(header))


if __name__ == '__main__':
    main()
```
